```python
import torch

def _softmax(x, axis=-1):
    return torch.softmax(x, dim=axis)
def _gelu(x):
    return torch.nn.functional.gelu(x, approximate="tanh")
def _silu(x):
    return torch.nn.functional.silu(x)
def _sigmoid(x):
    return torch.sigmoid(x)
def _layernorm(x, axis=-1, eps=1e-5):
    m = x.mean(dim=axis, keepdim=True)
    v = x.var(dim=axis, keepdim=True, unbiased=False)
    return (x - m) / torch.sqrt(v + eps)
def _scatter_add(tgt, idx, src, axis=0):
    return tgt.clone().index_add_(axis, idx, src)
def _segment_sum(src, seg, n):
    out = torch.zeros((n,) + src.shape[1:], dtype=src.dtype)
    return out.index_add_(0, seg, src)
def _pad(x, pw):
    flat = tuple(v for pair in reversed(pw) for v in pair)
    return torch.nn.functional.pad(x, flat)

kernel_name = 'standalone__fft_conv__vision'

def setup_inputs():

    _w = (lambda a: (lambda t: t.to(torch.bfloat16) if t.is_floating_point() else t)(torch.as_tensor(a)))
    H = W = 224
    C = 96
    K = 3
    return {
        "x": _w((lambda *s: torch.randn(*s, dtype=torch.bfloat16) * 0.05)(1, H, W, C)),
        "w": _w((lambda *s: torch.randn(*s, dtype=torch.bfloat16) * 0.05)(K, K, C, C)),
    }

def reference(x, w):
    B, H, W, C = x.shape
    K = w.shape[0]
    wp = _pad(w, ((0, H - K), (0, W - K), (0, 0), (0, 0)))
    Xf = (lambda x, axes=(-2,-1): torch.fft.rfft2(x.float(), dim=axes))(x, axes=(1, 2))
    Wf = (lambda x, axes=(-2,-1): torch.fft.rfft2(x.float(), dim=axes))(wp, axes=(0, 1))
    Yf = torch.einsum('bhwi,hwio->bhwo', Xf, Wf)
    y = (lambda x, s, axes=(-2,-1): torch.fft.irfft2(x, s=s, dim=axes).to(torch.bfloat16))(Yf, (H, W), axes=(1, 2))
    return y
```

```python
import sys, json
XP = 3456
XROWS = 16
WBASE = XROWS*XP
KGS = 4640
WSLOT = 4*KGS
NSLOT = 5
LDS = WBASE + NSLOT*WSLOT

def gen(cfg):
    stamps = cfg.get('stamps', False)
    L = []
    e = L.append
    vWA, vWS, vWA2, vWS2 = 1, 2, 3, 4
    vX = [5, 6, 7]
    vDW = [8, 9, 10, 11, 12]
    vDX = 13
    vOB, vOS = 14, 15
    vT = 16
    vF = 32
    NF = 4
    vAcc = 48
    vW0 = 132
    def wreg(idx):
        return ('a', 4*idx) if idx < 64 else ('v', vW0+4*(idx-64))
    def rr(kind, b, n): return f"{kind}[{b}:{b+n-1}]"
    def acc(r, t): return vAcc + 12*r + 4*t
    sX, sWt, sO = 4, 8, 12
    sRow = 16
    sWave = 32; sM0X = 33; sM0W = 34; sOut = 35; sTmp = 36; sG = 37; sOrow = 38
    sSt = 40
    nst = [0]; stn = []
    def stamp(name):
        if stamps:
            e(f"s_memtime s[{sSt+2*nst[0]}:{sSt+2*nst[0]+1}]"); nst[0] += 1; stn.append(name)
    groups = cfg.get('groups', [(c, kw) for c in range(3) for kw in range(3)])
    stamp('start')
    e("s_load_dwordx4 s[4:7], s[0:1], 0")
    e("s_load_dwordx2 s[12:13], s[0:1], 16")
    if stamps: e("s_load_dwordx2 s[96:97], s[0:1], 32")
    e("s_cmp_ge_u32 s2, 224")
    e("s_cbranch_scc1 L_end")
    e("v_lshrrev_b32 v16, 6, v0")
    e("v_and_b32 v0, 63, v0")
    e("v_readfirstlane_b32 s32, v16")
    e("s_and_b32 s36, s2, 7"); e("s_mul_i32 s36, s36, 28"); e("s_lshr_b32 s37, s2, 3"); e("s_add_u32 s36, s36, s37")
    e("s_mul_i32 s37, s36, 4682"); e("s_lshr_b32 s37, s37, 16")
    e("s_mul_i32 s38, s37, 14"); e("s_sub_u32 s36, s36, s38")
    e("s_lshl_b32 s36, s36, 4")
    e("s_mul_i32 s33, s32, 1536")
    e("v_lshlrev_b32 v8, 4, v0")
    e("v_add_u32 v8, s33, v8")
    e("v_lshrrev_b32 v16, 5, v0")
    e("v_mul_u32_u24 v16, 53760, v16")
    e("v_add_u32 v9, v8, v16")
    e("v_add_u32 v10, 53760, v8")
    e(f"v_add_u32 v11, {2*53760}, v8")
    e(f"v_add_u32 v12, {2*53760+4096}, v8")
    e(f"s_mul_i32 s34, s32, {KGS}"); e(f"s_add_u32 s34, s34, {WBASE}")
    e("s_lshl_b32 s33, s32, 6")
    e("v_add_u32 v16, s33, v0")
    e("v_mul_u32_u24 v17, 171, v16")
    e("v_lshrrev_b32 v17, 11, v17")
    e("v_mul_u32_u24 v18, 12, v17")
    e("v_sub_u32 v16, v16, v18")
    e("v_lshrrev_b32 v18, 1, v17")
    e("v_and_b32 v18, 2, v18")
    e("v_xor_b32 v16, v16, v18")
    e("v_add_u32 v17, s36, v17")
    e("v_subrev_u32 v17, 2, v17")
    e("v_add_u32 v18, 224, v17")
    e("v_min_u32 v17, v17, v18")
    e("v_mul_u32_u24 v17, 192, v17")
    e("v_lshl_add_u32 v13, v16, 4, v17")
    e("s_lshl_b32 s33, s32, 10")
    e("s_add_u32 s39, s38, 222"); e("s_sub_u32 s16, s38, 2"); e("s_cmp_eq_u32 s38, 0")
    e("s_cselect_b32 s16, s39, s16"); e("s_mul_i32 s16, s16, 43008"); e("s_add_u32 s17, s16, 43008")
    e("s_mul_i32 s18, s38, 43008")
    for i in range(3, 16): e(f"s_add_u32 s{16+i}, s{15+i}, 43008")
    e("s_cmp_eq_u32 s32, 3"); e("s_cselect_b32 s98, 0xffffff, -1"); e("s_cselect_b32 s99, 0, -1")
    e("s_waitcnt lgkmcnt(0)")
    e("s_mov_b32 s8, s6"); e("s_mov_b32 s9, s7"); e("s_mov_b32 s10, 165888"); e("s_mov_b32 s11, 0x20000")
    e("s_mov_b32 s6, 9633792"); e("s_mov_b32 s7, 0x20000")
    e("s_mov_b32 s14, 9633792"); e("s_mov_b32 s15, 0x20000")
    vm = [0]
    ds = [0]
    vmdone = {}
    dsdone = {}
    def dmaW(g):
        c, kw = groups[g]; slot = g % NSLOT
        so = kw*18432 + c*6144
        out = []
        out.append(([f"s_mov_b32 s{sG}, {so}", f"s_add_u32 m0, s{sM0W}, {slot*WSLOT}", "s_nop 0",
                     f"buffer_load_dwordx4 v8, s[8:11], s{sG} offen lds"], 'vm', None))
        for m in (1, 2, 3):
            out.append(([f"buffer_load_dwordx4 v{8+m}, s[8:11], s{sG} offen offset:{1024*m} lds"], 'vm', None))
        out.append(([f"s_add_u32 m0, s{sM0W}, {slot*WSLOT+4096}", "s_mov_b32 exec_hi, 0",
                     f"buffer_load_dwordx4 v12, s[8:11], s{sG} offen lds", "s_mov_b32 exec_hi, -1"], 'vm', ('W', g)))
        return out
    def dmaX(i):
        return [([f"s_add_u32 m0, s{sM0X}, {i*XP}", "s_mov_b64 exec, s[98:99]",
                  f"buffer_load_dwordx4 v13, s[4:7], s{sRow+i} offen lds", "s_mov_b64 exec, -1"], 'vm', ('X', i))]
    def wread(g):
        slot = g % NSLOT; out = []
        for kh in (2, 1, 0):
            for t in range(3):
                k, b = wreg(g*9 + kh*3 + t)
                for half in range(2):
                    off = slot*WSLOT + kh*1536 + half*768
                    va = vWA if t < 2 else vWS
                    if t == 1: off += 32
                    if slot >= 3: off -= 3*WSLOT; va += 2
                    out.append(([f"ds_read_b64_tr_b16 {rr(k, b+2*half, 2)}, v{va} offset:{off}"], 'ds', ('w', g, kh, t) if half else None))
        return out
    def put(item):
        lines, kind, tag = item
        for l in lines: e(l)
        if kind == 'vm':
            vm[0] += 1
            if tag: vmdone[tag] = vm[0]
        elif kind == 'ds':
            ds[0] += 1
            if tag: dsdone[tag] = ds[0]
    dswaited = [0]
    def waitds(tag):
        n = dsdone[tag]
        if n > dswaited[0]:
            e(f"s_waitcnt lgkmcnt({min(15, ds[0]-n)})"); dswaited[0] = max(n, ds[0]-15)
    plan = cfg['plan']
    first = True
    for tok in plan['init']:
        if tok[0] == 'W':
            for it in dmaW(tok[1]): put(it)
        elif tok[0] == 'X':
            for it in dmaX(tok[1]): put(it)
        elif tok[0] == 'addr':
            e("v_lshrrev_b32 v16, 4, v0")
            e("v_and_b32 v17, 15, v0")
            e("s_and_b32 s39, s32, 1")
            e("s_lshr_b32 s3, s32, 1")
            e(f"v_mul_u32_u24 v1, {KGS}, v16")
            e("v_bfe_u32 v18, v0, 2, 2"); e("v_mul_u32_u24 v18, 192, v18"); e("v_add_u32 v1, v1, v18")
            e("v_and_b32 v18, 3, v0"); e("v_lshl_add_u32 v1, v18, 3, v1")
            e(f"v_add_u32 v1, {WBASE}, v1")
            e("s_lshl_b32 s35, s39, 5"); e("s_add_u32 s35, s35, 64")
            e("v_add_u32 v2, s35, v1")
            e("s_lshl_b32 s39, s39, 7")
            e("v_add_u32 v1, s39, v1")
            e(f"v_add_u32 v3, {3*WSLOT}, v1"); e(f"v_add_u32 v4, {3*WSLOT}, v2")
            e("v_mul_u32_u24 v14, 192, v17")
            e("v_lshl_add_u32 v15, v16, 3, v14"); e("v_add_u32 v15, s35, v15")
            e("v_and_b32 v18, 1, v16"); e("v_lshl_add_u32 v14, v18, 5, v14")
            e("v_lshrrev_b32 v18, 1, v16"); e("v_lshl_add_u32 v14, v18, 4, v14"); e("v_add_u32 v14, s39, v14")
            e(f"s_mul_i32 s39, s3, {7*XP}")
            for kw in range(3):
                e(f"v_add_u32 v18, {2-kw}, v17")
                e("v_lshrrev_b32 v19, 1, v18"); e("v_and_b32 v19, 2, v19"); e("v_xor_b32 v19, v19, v16")
                e("v_mul_u32_u24 v18, 192, v18"); e(f"v_lshl_add_u32 v{vX[kw]}, v19, 4, v18")
                e(f"v_add_u32 v{vX[kw]}, s39, v{vX[kw]}")
            e("s_mul_i32 s3, s3, 7"); e("s_add_u32 s3, s3, s38"); e("s_mul_i32 s3, s3, 224"); e("s_add_u32 s3, s3, s36")
            e("s_mul_i32 s35, s3, 192")
    stamp('issued')
    seq = plan['seq']
    units = [t for t in seq if t[0] == 'u']
    assert sorted((t[1], t[2]) for t in units) == [(i, g) for i in range(9) for g in range(9)]
    remaining = {r: 27 for r in range(7)}
    started = set()
    side = []
    uidx = [0]
    fr_issued = [0]
    barpos = [0]; ubar = []; nb = 0
    for t in seq:
        if t[0] == 'bar': nb += 1
        if t[0] == 'u': ubar.append(nb)
    xavail = {}; nb = 0
    for t in seq:
        if t[0] == 'bar':
            nb += 1
            for tg in t[1]:
                if tg[0] == 'X': xavail[tg[1]] = nb
    def xbar(i): return max(xavail[i], xavail[i+7])
    curbar = [0]
    PF = cfg.get('pf', 2)
    def frag_item(n):
        _, i, g = units[n]; c, kw = groups[g]
        return ([f"ds_read_b128 v[{vF+4*(n%NF)}:{vF+4*(n%NF)+3}], v{vX[kw]} offset:{i*XP+c*64}"], 'ds', ('f', n))
    def try_frags():
        out = []
        while fr_issued[0] < len(units) and fr_issued[0] <= uidx[0]+PF and xbar(units[fr_issued[0]][1]) <= curbar[0]:
            out.append(frag_item(fr_issued[0])); fr_issued[0] += 1
        return out
    pend_store = []
    nm = [0]
    tset = [0]
    def store_items(r):
        T = vT + 8*(tset[0] & 1); tset[0] += 1
        a = lambda t: acc(r, t)
        cv = lambda d, s: f"v_cvt_pk_bf16_f32 v{d}, v{s}, v{s+1}"
        nt = cfg.get('stflag', '')
        return [([cv(T, a(0)), cv(T+1, a(0)+2)], 'v', None), ([cv(T+2, a(1)), cv(T+3, a(1)+2)], 'v', None),
                ([cv(T+4, a(2)), cv(T+5, a(2)+2)], 'v', None),
                ([f"s_add_u32 s{sOrow}, s{sOut}, {r*43008}", f"v_permlane16_swap_b32 v{T}, v{T+2}"], 'v', None),
                ([f"v_permlane16_swap_b32 v{T+1}, v{T+3}"], 'v', None),
                ([f"buffer_store_dwordx2 v[{T+4}:{T+5}], v{vOS}, s[12:15], s{sOrow} offen {nt}"], 'vm', None),
                ([f"buffer_store_dwordx4 v[{T}:{T+3}], v{vOB}, s[12:15], s{sOrow} offen {nt}"], 'vm', None)]
    def flush_side_until(pred):
        while side and pred(): put(side.pop(0))
    wq = set()
    for t in seq:
        if t[0] == 'stamp': stamp(t[1])
        elif t[0] == 'bar':
            for g in t[2] if len(t) > 2 else []:
                flush_side_until(lambda: ('w', g, 0, 2) not in dsdone)
                waitds(('w', g, 0, 2))
            need = max(vmdone[tuple(tg)] for tg in t[1]) if t[1] else 0
            if need: e(f"s_waitcnt vmcnt({vm[0]-need})")
            e("s_barrier"); curbar[0] += 1
            for it in try_frags(): put(it)
        elif t[0] == 'wread':
            side.extend(wread(t[1]))
        elif t[0] == 'dma':
            side.extend(dmaW(t[1][1]) if t[1][0] == 'W' else dmaX(t[1][1]))
        elif t[0] == 'u':
            n = uidx[0]; _, i, g = t
            assert fr_issued[0] > n, (t, "frag not issued")
            for kh in (2, 1, 0)[::-1] if cfg.get('khrev') else (2, 1, 0):
                r = i - 2 + kh
                if not (0 <= r <= 6): continue
                for tt in range(3):
                    tag = ('w', g, kh, tt)
                    flush_side_until(lambda: tag not in dsdone)
                    waitds(tag); waitds(('f', n))
                    k, b = wreg(g*9 + kh*3 + tt)
                    A = acc(r, tt)
                    cin = f"v[{A}:{A+3}]" if (r, tt) in started else "0"
                    started.add((r, tt))
                    e(f"v_mfma_f32_16x16x32_bf16 v[{A}:{A+3}], {rr(k, b, 4)}, v[{vF+4*(n%NF)}:{vF+4*(n%NF)+3}], {cin}")
                    nm[0] += 1
                    if pend_store and nm[0] - pend_store[0][1] >= 9:
                        side[0:0] = store_items(pend_store.pop(0)[0])
                    if side: put(side.pop(0))
                remaining[r] -= 1
                if remaining[r] == 0: pend_store.append((r, nm[0]))
            uidx[0] += 1
            for it in try_frags(): put(it)
    stamp('mfma_done')
    while side: put(side.pop(0))
    if pend_store: e("s_nop 7")
    for r, _ in pend_store:
        its = store_items(r)
        for j, it in enumerate(its):
            if j == 3: e("s_nop 1")
            put(it)
    if stamps:
        stamp('stores_issued')
        e("s_waitcnt vmcnt(0)")
        stamp('end')
        e("s_getreg_b32 s39, hwreg(HW_REG_XCC_ID)")
        e("s_waitcnt lgkmcnt(0)")
        e("s_mov_b32 s8, s96"); e("s_mov_b32 s9, s97"); e("s_mov_b32 s10, 0x100000")
        e("s_lshl_b32 s3, s2, 2"); e("s_add_u32 s3, s3, s32"); e("s_lshl_b32 s3, s3, 8")
        e("v_mov_b32 v1, 0"); e("v_mov_b32 v2, s39")
        e("buffer_store_dword v2, v1, s[8:11], s3 offen offset:252")
        for j in range(nst[0]):
            e(f"v_mov_b32 v2, s{sSt+2*j}"); e(f"v_mov_b32 v3, s{sSt+2*j+1}")
            e(f"buffer_store_dwordx2 v[2:3], v1, s[8:11], s3 offen offset:{8*j}")
            e("s_nop 1")
    e("L_end:")
    e("s_endpgm")
    hdr = open('standalone__fft_conv__vision.s.ref').read().split('\n')
    out = []
    for l in hdr:
        if l.startswith('; @launch'): out.append(f"; @launch grid=(224,1,1) block=(256,1,1) lds={LDS}"); continue
        out.append(l)
        if l.startswith('standalone__fft_conv__vision_kernel:'): break
    out += ["    "+l if not l.endswith(':') else l for l in L]
    out += """.section .rodata,"a"
.p2align 6
.amdhsa_kernel standalone__fft_conv__vision_kernel
  .amdhsa_next_free_vgpr 512
  .amdhsa_next_free_sgpr 102
  .amdhsa_accum_offset 256
  .amdhsa_group_segment_fixed_size 0
  .amdhsa_kernarg_size 40
  .amdhsa_user_sgpr_count 2
  .amdhsa_user_sgpr_kernarg_segment_ptr 1
  .amdhsa_system_sgpr_workgroup_id_x 1
.end_amdhsa_kernel""".split('\n')
    return '\n'.join(out)+'\n', stn

def plan_v1():
    init = [('W',0),('X',0),('X',7),('X',1),('X',8),('addr',),('X',2),('X',9),('X',3),('X',10),('W',1),('X',4),('X',11),('W',2),
            ('X',5),('X',12),('W',3),('X',6),('X',13),('W',4),('X',14),('X',15)]
    seq = []
    done = set()
    def U(lst):
        for i, g in lst:
            if (i, g) not in done: done.add((i, g)); seq.append(('u', i, g))
    seq += [('bar', [('W',0),('X',0),('X',7),('X',1),('X',8),('X',2),('X',9),('X',3),('X',10)]), ('stamp','b0'), ('wread',0)]
    U([(0,0),(1,0),(2,0)])
    seq += [('bar', [('W',1),('X',4),('X',11)], [0]), ('stamp','b1'), ('wread',1), ('dma',('W',5))]
    U([(3,0),(4,0),(0,1),(1,1),(2,1)])
    seq += [('bar', [('W',2),('X',5),('X',12)], [1]), ('stamp','b2'), ('wread',2), ('dma',('W',6))]
    U([(3,1),(4,1),(0,2),(1,2),(2,2)])
    seq += [('bar', [('W',3),('X',6),('X',13)], [2]), ('stamp','b3'), ('wread',3), ('dma',('W',7))]
    U([(3,2),(4,2),(0,3),(1,3),(2,3)])
    seq += [('bar', [('W',4),('X',14),('X',15)], [3]), ('stamp','b4'), ('wread',4), ('dma',('W',8))]
    U([(3,3),(4,3),(0,4),(1,4),(2,4)])
    for g in range(5, 9):
        seq += [('bar', [('W',g)]), ('stamp',f'b{g}'), ('wread',g)]
        U([(3,g-1),(4,g-1),(0,g),(1,g),(2,g)])
    U([(3,8),(4,8)])
    seq += [('stamp','phB')]
    for i in range(5, 9): U([(i, g) for g in range(9)])
    return {'init': init, 'seq': seq}

if __name__ == '__main__':
    cfg = {'plan': plan_v1()}
    for a in sys.argv[2:]:
        k, v = a.split('='); cfg[k] = json.loads(v) if v and v[0] in '0123456789[tf' else v
    if 'planf' in cfg:
        import plans; cfg['plan'] = getattr(plans, cfg['planf'])()
    s, stn = gen(cfg)
    open(sys.argv[1], 'w').write(s)
    print(stn)
```

```python
class P:
    def __init__(s): s.seq=[]; s.done=set()
    def U(s,lst):
        for i,g in lst:
            if (i,g) not in s.done: s.done.add((i,g)); s.seq.append(('u',i,g))
    def bar(s,tags,war=[],name=None):
        s.seq.append(('bar',tags,war))
        if name: s.seq.append(('stamp',name))
    def a(s,*t): s.seq += list(t)
W=lambda g:('W',g)
def XX(i): return [('X',i),('X',i+7)] if i not in (7,8) else [('X',i+7)]
def D(*toks): return [('dma',t) for t in toks]

def probe():
    r=v2()
    init=[W(0),('stamp','i0')]+XX(0)+XX(1)+[('addr',)]+XX(2)+XX(3)+XX(4)+XX(5)+[W(1),('stamp','i1'),
      ('wait',W(0),'aW0'),('wait',('X',9),'aX2'),('wait',('X',12),'aX5'),('wait',W(1),'aW1')]
    r['init']=init
    r['seq']=[t for t in r['seq'] if t[0]!='stamp' or t[1] in('b2','b4','b6','b8','phB')]
    return r

def v2():
    p=P()
    init=[W(0)]+XX(0)+XX(1)+[('addr',)]+XX(2)+XX(3)+XX(4)+XX(5)+[W(1)]
    p.bar([W(0)]+XX(0)+XX(1)+XX(2),name='b0'); p.a(('wread',0),*D(W(2)))
    p.U([(0,0),(1,0),(2,0)])
    p.bar(XX(3)+XX(4)+XX(5),name='b0x'); p.a(*D(W(3)))
    p.U([(3,0),(4,0),(5,0)])
    p.bar([W(1)],[0],name='b1'); p.a(('wread',1),*D(W(4),W(5)))
    p.U([(i,1) for i in range(6)])
    p.bar([W(2)],[1],name='b2'); p.a(('wread',2),*D(W(6)))
    p.U([(i,2) for i in range(5)])
    p.bar([W(3)],[2],name='b3'); p.a(('wread',3),*D(W(7)))
    p.U([(5,2)]+[(i,3) for i in range(4)])
    p.bar([W(4)],[3],name='b4'); p.a(('wread',4),*D(W(8),*XX(6),*XX(7),*XX(8)))
    p.U([(4,3)]+[(i,4) for i in range(4)])
    for g in range(5,9):
        p.bar([W(g)],name=f'b{g}'); p.a(('wread',g))
        p.U([(4,g-1)]+[(i,g) for i in range(4)])
    p.bar(XX(6)+XX(7)+XX(8))
    p.U([(4,8)])
    p.a(('stamp','phB'))
    for i in range(5,9): p.U([(i,g) for g in range(9)])
    return {'init':init,'seq':p.seq}
```

```python
import sys, json
XP = 3456
XROWS = 16
WBASE = XROWS*XP
KGS = 4640
WSLOT = 4*KGS
NSLOT = 5
LDS = WBASE + NSLOT*WSLOT

def gen(cfg):
    stamps = cfg.get('stamps', False)
    L = []
    e = L.append
    vWA, vWS, vWA2, vWS2 = 1, 2, 3, 4
    vX = [5, 6, 7]
    vDW = [8, 9, 10, 11, 12]
    vDX = 13
    vOB, vOS = 14, 15
    vT = 16
    vF = 32
    NF = 4
    vAcc = 48
    vW0 = 132
    def wreg(idx):
        return ('a', 4*idx) if idx < 64 else ('v', vW0+4*(idx-64))
    def rr(kind, b, n): return f"{kind}[{b}:{b+n-1}]"
    def acc(r, t): return vAcc + 12*r + 4*t
    sX, sWt, sO = 4, 8, 12
    sRow = 16
    sWave = 32; sM0X = 33; sM0W = 34; sOut = 35; sTmp = 36; sG = 37; sOrow = 38
    sSt = 40
    nst = [0]; stn = []
    def stamp(name):
        if stamps:
            op = "s_memrealtime" if name.startswith('R') else "s_memtime"
            e(f"{op} s[{sSt+2*nst[0]}:{sSt+2*nst[0]+1}]"); nst[0] += 1; stn.append(name)
    groups = cfg.get('groups', [(c, kw) for c in range(3) for kw in range(3)])
    stamp('Rstart'); stamp('start')
    e("s_load_dwordx4 s[4:7], s[0:1], 0")
    e("s_load_dwordx2 s[12:13], s[0:1], 16")
    if stamps: e("s_load_dwordx2 s[96:97], s[0:1], 32")
    e("s_cmp_ge_u32 s2, 224")
    e("s_cbranch_scc1 L_end")
    e("v_lshrrev_b32 v16, 6, v0")
    e("v_and_b32 v0, 63, v0")
    e("v_readfirstlane_b32 s32, v16")
    e("s_and_b32 s36, s2, 7"); e("s_mul_i32 s36, s36, 28"); e("s_lshr_b32 s37, s2, 3"); e("s_add_u32 s36, s36, s37")
    e("s_mul_i32 s37, s36, 4682"); e("s_lshr_b32 s37, s37, 16")
    e("s_mul_i32 s38, s37, 14"); e("s_sub_u32 s36, s36, s38")
    e("s_lshl_b32 s36, s36, 4")
    e("s_mul_i32 s33, s32, 1536")
    e("v_lshlrev_b32 v8, 4, v0")
    e("v_add_u32 v8, s33, v8")
    e("v_lshrrev_b32 v16, 5, v0")
    e("v_mul_u32_u24 v16, 53760, v16")
    e("v_add_u32 v9, v8, v16")
    e("v_add_u32 v10, 53760, v8")
    e(f"v_add_u32 v11, {2*53760}, v8")
    e(f"v_add_u32 v12, {2*53760+4096}, v8")
    e(f"s_mul_i32 s34, s32, {KGS}"); e(f"s_add_u32 s34, s34, {WBASE}")
    e("s_lshl_b32 s33, s32, 6")
    e("v_add_u32 v16, s33, v0")
    e("v_mul_u32_u24 v17, 171, v16")
    e("v_lshrrev_b32 v17, 11, v17")
    e("v_mul_u32_u24 v18, 12, v17")
    e("v_sub_u32 v16, v16, v18")
    e("v_lshrrev_b32 v18, 1, v17")
    e("v_and_b32 v18, 2, v18")
    e("v_xor_b32 v16, v16, v18")
    e("v_add_u32 v17, s36, v17")
    e("v_subrev_u32 v17, 2, v17")
    e("v_add_u32 v18, 224, v17")
    e("v_min_u32 v17, v17, v18")
    e("v_mul_u32_u24 v17, 192, v17")
    e("v_lshl_add_u32 v13, v16, 4, v17")
    e("s_lshl_b32 s33, s32, 10")
    e("s_add_u32 s39, s38, 222"); e("s_sub_u32 s16, s38, 2"); e("s_cmp_eq_u32 s38, 0")
    e("s_cselect_b32 s16, s39, s16"); e("s_mul_i32 s16, s16, 43008"); e("s_add_u32 s17, s16, 43008")
    e("s_mul_i32 s18, s38, 43008")
    for i in range(3, 16): e(f"s_add_u32 s{16+i}, s{15+i}, 43008")
    e("s_cmp_eq_u32 s32, 3"); e("s_cselect_b32 s98, 0xffffff, -1"); e("s_cselect_b32 s99, 0, -1")
    e("s_waitcnt lgkmcnt(0)")
    stamp('karg')
    e("s_mov_b32 s8, s6"); e("s_mov_b32 s9, s7"); e("s_mov_b32 s10, 165888"); e("s_mov_b32 s11, 0x20000")
    e("s_mov_b32 s6, 9633792"); e("s_mov_b32 s7, 0x20000")
    e("s_mov_b32 s14, 9633792"); e("s_mov_b32 s15, 0x20000")
    vm = [0]
    ds = [0]
    vmdone = {}
    dsdone = {}
    def dmaW(g):
        c, kw = groups[g]; slot = g % NSLOT
        so = kw*18432 + c*6144
        out = []
        out.append(([f"s_mov_b32 s{sG}, {so}", f"s_add_u32 m0, s{sM0W}, {slot*WSLOT}", "s_nop 0",
                     f"buffer_load_dwordx4 v8, s[8:11], s{sG} offen lds"], 'vm', None))
        for m in (1, 2, 3):
            out.append(([f"buffer_load_dwordx4 v{8+m}, s[8:11], s{sG} offen offset:{1024*m} lds"], 'vm', None))
        out.append(([f"s_add_u32 m0, s{sM0W}, {slot*WSLOT+4096}", "s_mov_b32 exec_hi, 0",
                     f"buffer_load_dwordx4 v12, s[8:11], s{sG} offen lds", "s_mov_b32 exec_hi, -1"], 'vm', ('W', g)))
        return out
    def dmaX(i):
        return [([f"s_add_u32 m0, s{sM0X}, {i*XP}", "s_mov_b64 exec, s[98:99]",
                  f"buffer_load_dwordx4 v13, s[4:7], s{sRow+i} offen lds", "s_mov_b64 exec, -1"], 'vm', ('X', i))]
    def wread(g):
        slot = g % NSLOT; out = []
        for kh in (2, 1, 0):
            for t in range(3):
                k, b = wreg(g*9 + kh*3 + t)
                for half in range(2):
                    off = slot*WSLOT + kh*1536 + half*768
                    va = vWA if t < 2 else vWS
                    if t == 1: off += 32
                    if slot >= 3: off -= 3*WSLOT; va += 2
                    out.append(([f"ds_read_b64_tr_b16 {rr(k, b+2*half, 2)}, v{va} offset:{off}"], 'ds', ('w', g, kh, t) if half else None))
        return out
    def put(item):
        lines, kind, tag = item
        for l in lines: e(l)
        if kind == 'vm':
            vm[0] += 1
            if tag: vmdone[tag] = vm[0]
        elif kind == 'ds':
            ds[0] += 1
            if tag: dsdone[tag] = ds[0]
    dswaited = [0]
    def waitds(tag):
        n = dsdone[tag]
        if n > dswaited[0]:
            e(f"s_waitcnt lgkmcnt({min(15, ds[0]-n)})"); dswaited[0] = max(n, ds[0]-15)
    plan = cfg['plan']
    first = True
    for tok in plan['init']:
        if tok[0] == 'W':
            for it in dmaW(tok[1]): put(it)
        elif tok[0] == 'X':
            for it in dmaX(tok[1]): put(it)
        elif tok[0] == 'stamp': stamp(tok[1])
        elif tok[0] == 'wait':
            e(f"s_waitcnt vmcnt({vm[0]-vmdone[tuple(tok[1])]})"); stamp(tok[2])
        elif tok[0] == 'addr':
            e("v_lshrrev_b32 v16, 4, v0")
            e("v_and_b32 v17, 15, v0")
            e("s_and_b32 s39, s32, 1")
            e("s_lshr_b32 s3, s32, 1")
            e(f"v_mul_u32_u24 v1, {KGS}, v16")
            e("v_bfe_u32 v18, v0, 2, 2"); e("v_mul_u32_u24 v18, 192, v18"); e("v_add_u32 v1, v1, v18")
            e("v_and_b32 v18, 3, v0"); e("v_lshl_add_u32 v1, v18, 3, v1")
            e(f"v_add_u32 v1, {WBASE}, v1")
            e("s_lshl_b32 s35, s39, 5"); e("s_add_u32 s35, s35, 64")
            e("v_add_u32 v2, s35, v1")
            e("s_lshl_b32 s39, s39, 7")
            e("v_add_u32 v1, s39, v1")
            e(f"v_add_u32 v3, {3*WSLOT}, v1"); e(f"v_add_u32 v4, {3*WSLOT}, v2")
            e("v_mul_u32_u24 v14, 192, v17")
            e("v_lshl_add_u32 v15, v16, 3, v14"); e("v_add_u32 v15, s35, v15")
            e("v_and_b32 v18, 1, v16"); e("v_lshl_add_u32 v14, v18, 5, v14")
            e("v_lshrrev_b32 v18, 1, v16"); e("v_lshl_add_u32 v14, v18, 4, v14"); e("v_add_u32 v14, s39, v14")
            e(f"s_mul_i32 s39, s3, {7*XP}")
            for kw in range(3):
                e(f"v_add_u32 v18, {2-kw}, v17")
                e("v_lshrrev_b32 v19, 1, v18"); e("v_and_b32 v19, 2, v19"); e("v_xor_b32 v19, v19, v16")
                e("v_mul_u32_u24 v18, 192, v18"); e(f"v_lshl_add_u32 v{vX[kw]}, v19, 4, v18")
                e(f"v_add_u32 v{vX[kw]}, s39, v{vX[kw]}")
            e("s_mul_i32 s3, s3, 7"); e("s_add_u32 s3, s3, s38"); e("s_mul_i32 s3, s3, 224"); e("s_add_u32 s3, s3, s36")
            e("s_mul_i32 s35, s3, 192")
    stamp('issued')
    seq = plan['seq']
    units = [t for t in seq if t[0] == 'u']
    assert sorted((t[1], t[2]) for t in units) == [(i, g) for i in range(9) for g in range(9)]
    remaining = {r: 27 for r in range(7)}
    started = set()
    side = []
    uidx = [0]
    fr_issued = [0]
    barpos = [0]; ubar = []; nb = 0
    for t in seq:
        if t[0] == 'bar': nb += 1
        if t[0] == 'u': ubar.append(nb)
    xavail = {}; nb = 0
    for t in seq:
        if t[0] == 'bar':
            nb += 1
            for tg in t[1]:
                if tg[0] == 'X': xavail[tg[1]] = nb
    def xbar(i): return max(xavail[i], xavail[i+7])
    curbar = [0]
    PF = cfg.get('pf', 2)
    def frag_item(n):
        _, i, g = units[n]; c, kw = groups[g]
        return ([f"ds_read_b128 v[{vF+4*(n%NF)}:{vF+4*(n%NF)+3}], v{vX[kw]} offset:{i*XP+c*64}"], 'ds', ('f', n))
    def try_frags():
        out = []
        while fr_issued[0] < len(units) and fr_issued[0] <= uidx[0]+PF and xbar(units[fr_issued[0]][1]) <= curbar[0]:
            out.append(frag_item(fr_issued[0])); fr_issued[0] += 1
        return out
    pend_store = []
    nm = [0]
    tset = [0]
    def store_items(r):
        T = vT + 8*(tset[0] & 1); tset[0] += 1
        a = lambda t: acc(r, t)
        cv = lambda d, s: f"v_cvt_pk_bf16_f32 v{d}, v{s}, v{s+1}"
        nt = cfg.get('stflag', '')
        return [([cv(T, a(0)), cv(T+1, a(0)+2)], 'v', None), ([cv(T+2, a(1)), cv(T+3, a(1)+2)], 'v', None),
                ([cv(T+4, a(2)), cv(T+5, a(2)+2)], 'v', None),
                ([f"s_add_u32 s{sOrow}, s{sOut}, {r*43008}", f"v_permlane16_swap_b32 v{T}, v{T+2}"], 'v', None),
                ([f"v_permlane16_swap_b32 v{T+1}, v{T+3}"], 'v', None),
                ([f"buffer_store_dwordx2 v[{T+4}:{T+5}], v{vOS}, s[12:15], s{sOrow} offen {nt}"], 'vm', None),
                ([f"buffer_store_dwordx4 v[{T}:{T+3}], v{vOB}, s[12:15], s{sOrow} offen {nt}"], 'vm', None)]
    def flush_side_until(pred):
        while side and pred(): put(side.pop(0))
    lastvm = [-99]
    for t in seq:
        if t[0] == 'stamp': stamp(t[1])
        elif t[0] == 'bar':
            for g in t[2] if len(t) > 2 else []:
                flush_side_until(lambda: ('w', g, 0, 2) not in dsdone)
                waitds(('w', g, 0, 2))
            for tg in t[1]: flush_side_until(lambda: tuple(tg) not in vmdone)
            need = max(vmdone[tuple(tg)] for tg in t[1]) if t[1] else 0
            if need: e(f"s_waitcnt vmcnt({vm[0]-need})")
            e("s_barrier"); curbar[0] += 1
            for it in try_frags(): put(it)
        elif t[0] == 'wread':
            side.extend(wread(t[1]))
        elif t[0] == 'dma':
            side.extend(dmaW(t[1][1]) if t[1][0] == 'W' else dmaX(t[1][1]))
        elif t[0] == 'u':
            n = uidx[0]; _, i, g = t
            assert fr_issued[0] > n, (t, "frag not issued")
            for kh in (2, 1, 0)[::-1] if cfg.get('khrev') else (2, 1, 0):
                r = i - 2 + kh
                if not (0 <= r <= 6): continue
                for tt in range(3):
                    tag = ('w', g, kh, tt)
                    flush_side_until(lambda: tag not in dsdone)
                    waitds(tag); waitds(('f', n))
                    k, b = wreg(g*9 + kh*3 + tt)
                    A = acc(r, tt)
                    cin = f"v[{A}:{A+3}]" if (r, tt) in started else "0"
                    started.add((r, tt))
                    e(f"v_mfma_f32_16x16x32_bf16 v[{A}:{A+3}], {rr(k, b, 4)}, v[{vF+4*(n%NF)}:{vF+4*(n%NF)+3}], {cin}")
                    nm[0] += 1
                    if pend_store and nm[0] - pend_store[0][1] >= 9:
                        side[0:0] = store_items(pend_store.pop(0)[0])
                    if side:
                        if side[0][1] == 'vm' and nm[0] - lastvm[0] < cfg.get('vmgap', 1):
                            j = next((j for j, it in enumerate(side) if it[1] != 'vm'), None)
                            if j is not None: put(side.pop(j))
                        else:
                            if side[0][1] == 'vm': lastvm[0] = nm[0]
                            put(side.pop(0))
                remaining[r] -= 1
                if remaining[r] == 0: pend_store.append((r, nm[0]))
            uidx[0] += 1
            for it in try_frags(): put(it)
    stamp('mfma_done')
    while side: put(side.pop(0))
    if pend_store: e("s_nop 7")
    for r, _ in pend_store:
        its = store_items(r)
        for j, it in enumerate(its):
            if j == 3: e("s_nop 1")
            put(it)
    if stamps:
        stamp('stores_issued')
        e("s_waitcnt vmcnt(0)")
        stamp('end'); stamp('Rend')
        e("s_getreg_b32 s39, hwreg(HW_REG_XCC_ID)")
        e("s_waitcnt lgkmcnt(0)")
        e("s_mov_b32 s8, s96"); e("s_mov_b32 s9, s97"); e("s_mov_b32 s10, 0x100000")
        e("s_lshl_b32 s3, s2, 2"); e("s_add_u32 s3, s3, s32"); e("s_lshl_b32 s3, s3, 8")
        e("v_mov_b32 v1, 0"); e("v_mov_b32 v2, s39")
        e("buffer_store_dword v2, v1, s[8:11], s3 offen offset:252")
        for j in range(nst[0]):
            e(f"v_mov_b32 v2, s{sSt+2*j}"); e(f"v_mov_b32 v3, s{sSt+2*j+1}")
            e(f"buffer_store_dwordx2 v[2:3], v1, s[8:11], s3 offen offset:{8*j}")
            e("s_nop 1")
    e("L_end:")
    e("s_endpgm")
    hdr = open('standalone__fft_conv__vision.s.ref').read().split('\n')
    out = []
    for l in hdr:
        if l.startswith('; @launch'): out.append(f"; @launch grid=(224,1,1) block=(256,1,1) lds={LDS}"); continue
        out.append(l)
        if l.startswith('standalone__fft_conv__vision_kernel:'): break
    out += ["    "+l if not l.endswith(':') else l for l in L]
    out += """.section .rodata,"a"
.p2align 6
.amdhsa_kernel standalone__fft_conv__vision_kernel
  .amdhsa_next_free_vgpr 512
  .amdhsa_next_free_sgpr 102
  .amdhsa_accum_offset 256
  .amdhsa_group_segment_fixed_size 0
  .amdhsa_kernarg_size 40
  .amdhsa_user_sgpr_count 2
  .amdhsa_user_sgpr_kernarg_segment_ptr 1
  .amdhsa_system_sgpr_workgroup_id_x 1
.end_amdhsa_kernel""".split('\n')
    return '\n'.join(out)+'\n', stn

def plan_v1():
    init = [('W',0),('X',0),('X',7),('X',1),('X',8),('addr',),('X',2),('X',9),('X',3),('X',10),('W',1),('X',4),('X',11),('W',2),
            ('X',5),('X',12),('W',3),('X',6),('X',13),('W',4),('X',14),('X',15)]
    seq = []
    done = set()
    def U(lst):
        for i, g in lst:
            if (i, g) not in done: done.add((i, g)); seq.append(('u', i, g))
    seq += [('bar', [('W',0),('X',0),('X',7),('X',1),('X',8),('X',2),('X',9),('X',3),('X',10)]), ('stamp','b0'), ('wread',0)]
    U([(0,0),(1,0),(2,0)])
    seq += [('bar', [('W',1),('X',4),('X',11)], [0]), ('stamp','b1'), ('wread',1), ('dma',('W',5))]
    U([(3,0),(4,0),(0,1),(1,1),(2,1)])
    seq += [('bar', [('W',2),('X',5),('X',12)], [1]), ('stamp','b2'), ('wread',2), ('dma',('W',6))]
    U([(3,1),(4,1),(0,2),(1,2),(2,2)])
    seq += [('bar', [('W',3),('X',6),('X',13)], [2]), ('stamp','b3'), ('wread',3), ('dma',('W',7))]
    U([(3,2),(4,2),(0,3),(1,3),(2,3)])
    seq += [('bar', [('W',4),('X',14),('X',15)], [3]), ('stamp','b4'), ('wread',4), ('dma',('W',8))]
    U([(3,3),(4,3),(0,4),(1,4),(2,4)])
    for g in range(5, 9):
        seq += [('bar', [('W',g)]), ('stamp',f'b{g}'), ('wread',g)]
        U([(3,g-1),(4,g-1),(0,g),(1,g),(2,g)])
    U([(3,8),(4,8)])
    seq += [('stamp','phB')]
    for i in range(5, 9): U([(i, g) for g in range(9)])
    return {'init': init, 'seq': seq}

if __name__ == '__main__':
    cfg = {'plan': plan_v1()}
    for a in sys.argv[2:]:
        k, v = a.split('='); cfg[k] = json.loads(v) if v and v[0] in '0123456789[tf' else v
    if 'planf' in cfg:
        import plans; cfg['plan'] = getattr(plans, cfg['planf'])()
    s, stn = gen(cfg)
    open(sys.argv[1], 'w').write(s)
    print(stn)
```

```python
class P:
    def __init__(s): s.seq=[]; s.done=set()
    def U(s,lst):
        for i,g in lst:
            if (i,g) not in s.done: s.done.add((i,g)); s.seq.append(('u',i,g))
    def bar(s,tags,war=[],name=None):
        s.seq.append(('bar',tags,war))
        if name: s.seq.append(('stamp',name))
    def a(s,*t): s.seq += list(t)
W=lambda g:('W',g)
def XX(i): return [('X',i),('X',i+7)] if i not in (7,8) else [('X',i+7)]
def D(*toks): return [('dma',t) for t in toks]

def probe():
    r=v2()
    init=[W(0),('stamp','i0')]+XX(0)+XX(1)+[('addr',)]+XX(2)+XX(3)+XX(4)+XX(5)+[W(1),('stamp','i1'),
      ('wait',W(0),'aW0'),('wait',('X',9),'aX2'),('wait',('X',12),'aX5'),('wait',W(1),'aW1')]
    r['init']=init
    r['seq']=[t for t in r['seq'] if t[0]!='stamp' or t[1] in('b2','b4','b6','b8','phB')]
    return r

def v2():
    p=P()
    init=[W(0)]+XX(0)+XX(1)+[('addr',)]+XX(2)+XX(3)+XX(4)+XX(5)+[W(1)]
    p.bar([W(0)]+XX(0)+XX(1)+XX(2),name='b0'); p.a(('wread',0),*D(W(2)))
    p.U([(0,0),(1,0),(2,0)])
    p.bar(XX(3)+XX(4)+XX(5),name='b0x'); p.a(*D(W(3)))
    p.U([(3,0),(4,0),(5,0)])
    p.bar([W(1)],[0],name='b1'); p.a(('wread',1),*D(W(4),W(5)))
    p.U([(i,1) for i in range(6)])
    p.bar([W(2)],[1],name='b2'); p.a(('wread',2),*D(W(6)))
    p.U([(i,2) for i in range(5)])
    p.bar([W(3)],[2],name='b3'); p.a(('wread',3),*D(W(7)))
    p.U([(5,2)]+[(i,3) for i in range(4)])
    p.bar([W(4)],[3],name='b4'); p.a(('wread',4),*D(W(8),*XX(6),*XX(7),*XX(8)))
    p.U([(4,3)]+[(i,4) for i in range(4)])
    for g in range(5,9):
        p.bar([W(g)],name=f'b{g}'); p.a(('wread',g))
        p.U([(4,g-1)]+[(i,g) for i in range(4)])
    p.bar(XX(6)+XX(7)+XX(8))
    p.U([(4,8)])
    p.a(('stamp','phB'))
    for i in range(5,9): p.U([(i,g) for g in range(9)])
    return {'init':init,'seq':p.seq}
import gen
def v1few():
    r=gen.plan_v1()
    r['seq']=[t for t in r['seq'] if t[0]!='stamp' or t[1] in('b0','b2','b4','b6','b8','phB')]
    return r
```

```python
import sys, json
XP = 3456
XROWS = 16
WBASE = XROWS*XP
KGS = 4640
WSLOT = 4*KGS
NSLOT = 5
LDS = WBASE + NSLOT*WSLOT

def gen(cfg):
    stamps = cfg.get('stamps', False)
    L = []
    e = L.append
    vWA, vWS, vWA2, vWS2 = 1, 2, 3, 4
    vX = [5, 6, 7]
    vDW = [8, 9, 10, 11, 12]
    vDX = 13
    vOB, vOS = 14, 15
    vT = 16
    vF = 32
    NF = 4
    vAcc = 48
    vW0 = 132
    def wreg(idx):
        return ('a', 4*idx) if idx < 64 else ('v', vW0+4*(idx-64))
    def rr(kind, b, n): return f"{kind}[{b}:{b+n-1}]"
    def acc(r, t): return vAcc + 12*r + 4*t
    sX, sWt, sO = 4, 8, 12
    sRow = 16
    sWave = 32; sM0X = 33; sM0W = 34; sOut = 35; sTmp = 36; sG = 37; sOrow = 38
    sSt = 40
    nst = [0]; stn = []
    def stamp(name):
        if stamps:
            op = "s_memrealtime" if name.startswith('R') else "s_memtime"
            e(f"{op} s[{sSt+2*nst[0]}:{sSt+2*nst[0]+1}]"); nst[0] += 1; stn.append(name)
    groups = cfg.get('groups', [(c, kw) for c in range(3) for kw in range(3)])
    stamp('Rstart'); stamp('start')
    e("s_load_dwordx4 s[4:7], s[0:1], 0")
    e("s_load_dwordx2 s[12:13], s[0:1], 16")
    if stamps: e(f"s_load_dwordx2 s[96:97], s[0:1], {24 if stamps=='dbg' else 32}")
    e("s_cmp_ge_u32 s2, 224")
    e("s_cbranch_scc1 L_end")
    e("v_lshrrev_b32 v16, 6, v0")
    e("v_and_b32 v0, 63, v0")
    e("v_readfirstlane_b32 s32, v16")
    e("s_and_b32 s36, s2, 7"); e("s_mul_i32 s36, s36, 28"); e("s_lshr_b32 s37, s2, 3"); e("s_add_u32 s36, s36, s37")
    e("s_mul_i32 s37, s36, 4682"); e("s_lshr_b32 s37, s37, 16")
    e("s_mul_i32 s38, s37, 14"); e("s_sub_u32 s36, s36, s38")
    e("s_lshl_b32 s36, s36, 4")
    e("s_mul_i32 s33, s32, 1536")
    e("v_lshlrev_b32 v8, 4, v0")
    e("v_add_u32 v8, s33, v8")
    e("v_lshrrev_b32 v16, 5, v0")
    e("v_mul_u32_u24 v16, 53760, v16")
    e("v_add_u32 v9, v8, v16")
    e("v_add_u32 v10, 53760, v8")
    e(f"v_add_u32 v11, {2*53760}, v8")
    e(f"v_add_u32 v12, {2*53760+4096}, v8")
    e(f"s_mul_i32 s34, s32, {KGS}"); e(f"s_add_u32 s34, s34, {WBASE}")
    e("s_lshl_b32 s33, s32, 6")
    e("v_add_u32 v16, s33, v0")
    e("v_mul_u32_u24 v17, 171, v16")
    e("v_lshrrev_b32 v17, 11, v17")
    e("v_mul_u32_u24 v18, 12, v17")
    e("v_sub_u32 v16, v16, v18")
    e("v_lshrrev_b32 v18, 1, v17")
    e("v_and_b32 v18, 2, v18")
    e("v_xor_b32 v16, v16, v18")
    e("v_add_u32 v17, s36, v17")
    e("v_subrev_u32 v17, 2, v17")
    e("v_add_u32 v18, 224, v17")
    e("v_min_u32 v17, v17, v18")
    e("v_mul_u32_u24 v17, 192, v17")
    e("v_lshl_add_u32 v13, v16, 4, v17")
    e("s_lshl_b32 s33, s32, 10")
    e("s_add_u32 s39, s38, 222"); e("s_sub_u32 s16, s38, 2"); e("s_cmp_eq_u32 s38, 0")
    e("s_cselect_b32 s16, s39, s16"); e("s_mul_i32 s16, s16, 43008"); e("s_add_u32 s17, s16, 43008")
    e("s_mul_i32 s18, s38, 43008")
    for i in range(3, 16): e(f"s_add_u32 s{16+i}, s{15+i}, 43008")
    e("s_cmp_eq_u32 s32, 3"); e("s_cselect_b32 s98, 0xffffff, -1"); e("s_cselect_b32 s99, 0, -1")
    e("s_waitcnt lgkmcnt(0)")
    stamp('karg')
    e("s_mov_b32 s8, s6"); e("s_mov_b32 s9, s7"); e("s_mov_b32 s10, 165888"); e("s_mov_b32 s11, 0x20000")
    e("s_mov_b32 s6, 9633792"); e("s_mov_b32 s7, 0x20000")
    e("s_mov_b32 s14, 9633792"); e("s_mov_b32 s15, 0x20000")
    vm = [0]
    ds = [0]
    vmdone = {}
    dsdone = {}
    def dmaW(g):
        c, kw = groups[g]; slot = g % NSLOT
        so = kw*18432 + c*6144
        out = []
        out.append(([f"s_mov_b32 s{sG}, {so}", f"s_add_u32 m0, s{sM0W}, {slot*WSLOT}", "s_nop 0",
                     f"buffer_load_dwordx4 v8, s[8:11], s{sG} offen lds"], 'vm', None))
        for m in (1, 2, 3):
            out.append(([f"buffer_load_dwordx4 v{8+m}, s[8:11], s{sG} offen offset:{1024*m} lds"], 'vm', None))
        out.append(([f"s_add_u32 m0, s{sM0W}, {slot*WSLOT+4096}", "s_mov_b32 exec_hi, 0",
                     f"buffer_load_dwordx4 v12, s[8:11], s{sG} offen lds", "s_mov_b32 exec_hi, -1"], 'vm', ('W', g)))
        return out
    def dmaX(i):
        return [([f"s_add_u32 m0, s{sM0X}, {i*XP}", "s_mov_b64 exec, s[98:99]",
                  f"buffer_load_dwordx4 v13, s[4:7], s{sRow+i} offen lds", "s_mov_b64 exec, -1"], 'vm', ('X', i))]
    def wread(g):
        slot = g % NSLOT; out = []
        for kh in (2, 1, 0):
            for t in range(3):
                k, b = wreg(g*9 + kh*3 + t)
                for half in range(2):
                    off = slot*WSLOT + kh*1536 + half*768
                    va = vWA if t < 2 else vWS
                    if t == 1: off += 32
                    if slot >= 3: off -= 3*WSLOT; va += 2
                    out.append(([f"ds_read_b64_tr_b16 {rr(k, b+2*half, 2)}, v{va} offset:{off}"], 'ds', ('w', g, kh, t) if half else None))
        return out
    def put(item):
        lines, kind, tag = item
        for l in lines: e(l)
        if kind == 'vm':
            vm[0] += 1
            if tag: vmdone[tag] = vm[0]
        elif kind == 'ds':
            ds[0] += 1
            if tag: dsdone[tag] = ds[0]
    dswaited = [0]
    def waitds(tag):
        n = dsdone[tag]
        if n > dswaited[0]:
            e(f"s_waitcnt lgkmcnt({min(15, ds[0]-n)})"); dswaited[0] = max(n, ds[0]-15)
    plan = cfg['plan']
    first = True
    for tok in plan['init']:
        if tok[0] == 'W':
            for it in dmaW(tok[1]): put(it)
        elif tok[0] == 'X':
            for it in dmaX(tok[1]): put(it)
        elif tok[0] == 'stamp': stamp(tok[1])
        elif tok[0] == 'wait':
            e(f"s_waitcnt vmcnt({vm[0]-vmdone[tuple(tok[1])]})"); stamp(tok[2])
        elif tok[0] == 'addr':
            e("v_lshrrev_b32 v16, 4, v0")
            e("v_and_b32 v17, 15, v0")
            e("s_and_b32 s39, s32, 1")
            e("s_lshr_b32 s3, s32, 1")
            e(f"v_mul_u32_u24 v1, {KGS}, v16")
            e("v_bfe_u32 v18, v0, 2, 2"); e("v_mul_u32_u24 v18, 192, v18"); e("v_add_u32 v1, v1, v18")
            e("v_and_b32 v18, 3, v0"); e("v_lshl_add_u32 v1, v18, 3, v1")
            e(f"v_add_u32 v1, {WBASE}, v1")
            e("s_lshl_b32 s35, s39, 5"); e("s_add_u32 s35, s35, 64")
            e("v_add_u32 v2, s35, v1")
            e("s_lshl_b32 s39, s39, 7")
            e("v_add_u32 v1, s39, v1")
            e(f"v_add_u32 v3, {3*WSLOT}, v1"); e(f"v_add_u32 v4, {3*WSLOT}, v2")
            e("v_mul_u32_u24 v14, 192, v17")
            e("v_lshl_add_u32 v15, v16, 3, v14"); e("v_add_u32 v15, s35, v15")
            e("v_and_b32 v18, 1, v16"); e("v_lshl_add_u32 v14, v18, 5, v14")
            e("v_lshrrev_b32 v18, 1, v16"); e("v_lshl_add_u32 v14, v18, 4, v14"); e("v_add_u32 v14, s39, v14")
            e(f"s_mul_i32 s39, s3, {7*XP}")
            for kw in range(3):
                e(f"v_add_u32 v18, {2-kw}, v17")
                e("v_lshrrev_b32 v19, 1, v18"); e("v_and_b32 v19, 2, v19"); e("v_xor_b32 v19, v19, v16")
                e("v_mul_u32_u24 v18, 192, v18"); e(f"v_lshl_add_u32 v{vX[kw]}, v19, 4, v18")
                e(f"v_add_u32 v{vX[kw]}, s39, v{vX[kw]}")
            e("s_mul_i32 s3, s3, 7"); e("s_add_u32 s3, s3, s38"); e("s_mul_i32 s3, s3, 224"); e("s_add_u32 s3, s3, s36")
            e("s_mul_i32 s35, s3, 192")
    stamp('issued')
    seq = plan['seq']
    units = [t for t in seq if t[0] == 'u']
    assert sorted((t[1], t[2]) for t in units) == [(i, g) for i in range(9) for g in range(9)]
    remaining = {r: 27 for r in range(7)}
    started = set()
    side = []
    uidx = [0]
    fr_issued = [0]
    barpos = [0]; ubar = []; nb = 0
    for t in seq:
        if t[0] == 'bar': nb += 1
        if t[0] == 'u': ubar.append(nb)
    xavail = {}; nb = 0
    for t in seq:
        if t[0] == 'bar':
            nb += 1
            for tg in t[1]:
                if tg[0] == 'X': xavail[tg[1]] = nb
    def xbar(i): return max(xavail[i], xavail[i+7])
    curbar = [0]
    PF = cfg.get('pf', 2)
    def frag_item(n):
        _, i, g = units[n]; c, kw = groups[g]
        return ([f"ds_read_b128 v[{vF+4*(n%NF)}:{vF+4*(n%NF)+3}], v{vX[kw]} offset:{i*XP+c*64}"], 'ds', ('f', n))
    def try_frags():
        out = []
        while fr_issued[0] < len(units) and fr_issued[0] <= uidx[0]+PF and xbar(units[fr_issued[0]][1]) <= curbar[0]:
            out.append(frag_item(fr_issued[0])); fr_issued[0] += 1
        return out
    pend_store = []
    nm = [0]
    tset = [0]
    def store_items(r):
        T = vT + 8*(tset[0] & 1); tset[0] += 1
        a = lambda t: acc(r, t)
        cv = lambda d, s: f"v_cvt_pk_bf16_f32 v{d}, v{s}, v{s+1}"
        nt = cfg.get('stflag', '')
        return [([cv(T, a(0)), cv(T+1, a(0)+2)], 'v', None), ([cv(T+2, a(1)), cv(T+3, a(1)+2)], 'v', None),
                ([cv(T+4, a(2)), cv(T+5, a(2)+2)], 'v', None),
                ([f"s_add_u32 s{sOrow}, s{sOut}, {r*43008}", f"v_permlane16_swap_b32 v{T}, v{T+2}"], 'v', None),
                ([f"v_permlane16_swap_b32 v{T+1}, v{T+3}"], 'v', None),
                ([f"buffer_store_dwordx2 v[{T+4}:{T+5}], v{vOS}, s[12:15], s{sOrow} offen {nt}"], 'vm', None),
                ([f"buffer_store_dwordx4 v[{T}:{T+3}], v{vOB}, s[12:15], s{sOrow} offen {nt}"], 'vm', None)]
    def flush_side_until(pred):
        while side and pred(): put(side.pop(0))
    lastvm = [-99]
    for t in seq:
        if t[0] == 'stamp': stamp(t[1])
        elif t[0] == 'bar':
            for g in t[2] if len(t) > 2 else []:
                flush_side_until(lambda: ('w', g, 0, 2) not in dsdone)
                waitds(('w', g, 0, 2))
            for tg in t[1]: flush_side_until(lambda: tuple(tg) not in vmdone)
            need = max(vmdone[tuple(tg)] for tg in t[1]) if t[1] else 0
            if need: e(f"s_waitcnt vmcnt({vm[0]-need})")
            e("s_barrier"); curbar[0] += 1
            for it in try_frags(): put(it)
        elif t[0] == 'wread':
            side.extend(wread(t[1]))
        elif t[0] == 'dma':
            side.extend(dmaW(t[1][1]) if t[1][0] == 'W' else dmaX(t[1][1]))
        elif t[0] == 'u':
            n = uidx[0]; _, i, g = t
            assert fr_issued[0] > n, (t, "frag not issued")
            for kh in (2, 1, 0)[::-1] if cfg.get('khrev') else (2, 1, 0):
                r = i - 2 + kh
                if not (0 <= r <= 6): continue
                for tt in range(3):
                    tag = ('w', g, kh, tt)
                    flush_side_until(lambda: tag not in dsdone)
                    waitds(tag); waitds(('f', n))
                    k, b = wreg(g*9 + kh*3 + tt)
                    A = acc(r, tt)
                    cin = f"v[{A}:{A+3}]" if (r, tt) in started else "0"
                    started.add((r, tt))
                    e(f"v_mfma_f32_16x16x32_bf16 v[{A}:{A+3}], {rr(k, b, 4)}, v[{vF+4*(n%NF)}:{vF+4*(n%NF)+3}], {cin}")
                    nm[0] += 1
                    if pend_store and nm[0] - pend_store[0][1] >= 9:
                        side[0:0] = store_items(pend_store.pop(0)[0])
                    if side:
                        if side[0][1] == 'vm' and nm[0] - lastvm[0] < cfg.get('vmgap', 1):
                            j = next((j for j, it in enumerate(side) if it[1] != 'vm'), None)
                            if j is not None: put(side.pop(j))
                        else:
                            if side[0][1] == 'vm': lastvm[0] = nm[0]
                            put(side.pop(0))
                remaining[r] -= 1
                if remaining[r] == 0: pend_store.append((r, nm[0]))
            uidx[0] += 1
            for it in try_frags(): put(it)
    stamp('mfma_done')
    while side: put(side.pop(0))
    if pend_store: e("s_nop 7")
    for r, _ in pend_store:
        its = store_items(r)
        for j, it in enumerate(its):
            if j == 3: e("s_nop 1")
            put(it)
    if stamps:
        stamp('stores_issued')
        e("s_waitcnt vmcnt(0)")
        stamp('end'); stamp('Rend')
        e("s_getreg_b32 s39, hwreg(HW_REG_XCC_ID)")
        e("s_waitcnt lgkmcnt(0)")
        e("s_mov_b32 s8, s96"); e("s_mov_b32 s9, s97"); e("s_mov_b32 s10, 0x100000")
        if stamps == 'dbg':
            e("s_mov_b32 s10, 256"); e("v_mov_b32 v1, 0"); e("s_mov_b64 exec, 1")
            e(f"s_not_b32 s3, s{sSt}"); e("v_mov_b32 v2, s3"); e("buffer_atomic_umax v2, v1, s[8:11], 0 offen")
            e(f"v_mov_b32 v3, s{sSt+2*(nst[0]-1)}"); e("buffer_atomic_umax v3, v1, s[8:11], 0 offen offset:4")
            e(f"v_mov_b32 v4, s{sSt}"); e("buffer_atomic_umax v4, v1, s[8:11], 0 offen offset:8")
            for j in range(2, nst[0]-1):
                if j+1 > 15: break
                e(f"s_sub_u32 s3, s{sSt+2*j}, s{sSt+2}"); e(f"v_mov_b32 v{5+j}, s3")
                e(f"buffer_atomic_umax v{5+j}, v1, s[8:11], 0 offen offset:{4*(j+1)}")
            e("s_endpgm")
        e("s_lshl_b32 s3, s2, 2"); e("s_add_u32 s3, s3, s32"); e("s_lshl_b32 s3, s3, 8")
        e("v_mov_b32 v1, 0"); e("v_mov_b32 v2, s39")
        e("buffer_store_dword v2, v1, s[8:11], s3 offen offset:252")
        for j in range(nst[0]):
            e(f"v_mov_b32 v2, s{sSt+2*j}"); e(f"v_mov_b32 v3, s{sSt+2*j+1}")
            e(f"buffer_store_dwordx2 v[2:3], v1, s[8:11], s3 offen offset:{8*j}")
            e("s_nop 1")
    e("L_end:")
    e("s_endpgm")
    hdr = open('standalone__fft_conv__vision.s.ref').read().split('\n')
    out = []
    for l in hdr:
        if l.startswith('; @launch'): out.append(f"; @launch grid=(224,1,1) block=(256,1,1) lds={LDS}"); continue
        out.append(l)
        if l.startswith('standalone__fft_conv__vision_kernel:'): break
    out += ["    "+l if not l.endswith(':') else l for l in L]
    out += """.section .rodata,"a"
.p2align 6
.amdhsa_kernel standalone__fft_conv__vision_kernel
  .amdhsa_next_free_vgpr 512
  .amdhsa_next_free_sgpr 102
  .amdhsa_accum_offset 256
  .amdhsa_group_segment_fixed_size 0
  .amdhsa_kernarg_size 40
  .amdhsa_user_sgpr_count 2
  .amdhsa_user_sgpr_kernarg_segment_ptr 1
  .amdhsa_system_sgpr_workgroup_id_x 1
.end_amdhsa_kernel""".split('\n')
    return '\n'.join(out)+'\n', stn

def plan_v1():
    init = [('W',0),('X',0),('X',7),('X',1),('X',8),('addr',),('X',2),('X',9),('X',3),('X',10),('W',1),('X',4),('X',11),('W',2),
            ('X',5),('X',12),('W',3),('X',6),('X',13),('W',4),('X',14),('X',15)]
    seq = []
    done = set()
    def U(lst):
        for i, g in lst:
            if (i, g) not in done: done.add((i, g)); seq.append(('u', i, g))
    seq += [('bar', [('W',0),('X',0),('X',7),('X',1),('X',8),('X',2),('X',9),('X',3),('X',10)]), ('stamp','b0'), ('wread',0)]
    U([(0,0),(1,0),(2,0)])
    seq += [('bar', [('W',1),('X',4),('X',11)], [0]), ('stamp','b1'), ('wread',1), ('dma',('W',5))]
    U([(3,0),(4,0),(0,1),(1,1),(2,1)])
    seq += [('bar', [('W',2),('X',5),('X',12)], [1]), ('stamp','b2'), ('wread',2), ('dma',('W',6))]
    U([(3,1),(4,1),(0,2),(1,2),(2,2)])
    seq += [('bar', [('W',3),('X',6),('X',13)], [2]), ('stamp','b3'), ('wread',3), ('dma',('W',7))]
    U([(3,2),(4,2),(0,3),(1,3),(2,3)])
    seq += [('bar', [('W',4),('X',14),('X',15)], [3]), ('stamp','b4'), ('wread',4), ('dma',('W',8))]
    U([(3,3),(4,3),(0,4),(1,4),(2,4)])
    for g in range(5, 9):
        seq += [('bar', [('W',g)]), ('stamp',f'b{g}'), ('wread',g)]
        U([(3,g-1),(4,g-1),(0,g),(1,g),(2,g)])
    U([(3,8),(4,8)])
    seq += [('stamp','phB')]
    for i in range(5, 9): U([(i, g) for g in range(9)])
    return {'init': init, 'seq': seq}

if __name__ == '__main__':
    cfg = {'plan': plan_v1()}
    for a in sys.argv[2:]:
        k, v = a.split('='); cfg[k] = json.loads(v) if v and v[0] in '0123456789[tf' else v
    if 'planf' in cfg:
        import plans; cfg['plan'] = getattr(plans, cfg['planf'])()
    s, stn = gen(cfg)
    open(sys.argv[1], 'w').write(s)
    print(stn)
```

```python
class P:
    def __init__(s): s.seq=[]; s.done=set()
    def U(s,lst):
        for i,g in lst:
            if (i,g) not in s.done: s.done.add((i,g)); s.seq.append(('u',i,g))
    def bar(s,tags,war=[],name=None):
        s.seq.append(('bar',tags,war))
        if name: s.seq.append(('stamp',name))
    def a(s,*t): s.seq += list(t)
W=lambda g:('W',g)
def XX(i): return [('X',i),('X',i+7)] if i not in (7,8) else [('X',i+7)]
def D(*toks): return [('dma',t) for t in toks]

def probe():
    r=v2()
    init=[W(0),('stamp','i0')]+XX(0)+XX(1)+[('addr',)]+XX(2)+XX(3)+XX(4)+XX(5)+[W(1),('stamp','i1'),
      ('wait',W(0),'aW0'),('wait',('X',9),'aX2'),('wait',('X',12),'aX5'),('wait',W(1),'aW1')]
    r['init']=init
    r['seq']=[t for t in r['seq'] if t[0]!='stamp' or t[1] in('b2','b4','b6','b8','phB')]
    return r

def v2():
    p=P()
    init=[W(0)]+XX(0)+XX(1)+[('addr',)]+XX(2)+XX(3)+XX(4)+XX(5)+[W(1)]
    p.bar([W(0)]+XX(0)+XX(1)+XX(2),name='b0'); p.a(('wread',0),*D(W(2)))
    p.U([(0,0),(1,0),(2,0)])
    p.bar(XX(3)+XX(4)+XX(5),name='b0x'); p.a(*D(W(3)))
    p.U([(3,0),(4,0),(5,0)])
    p.bar([W(1)],[0],name='b1'); p.a(('wread',1),*D(W(4),W(5)))
    p.U([(i,1) for i in range(6)])
    p.bar([W(2)],[1],name='b2'); p.a(('wread',2),*D(W(6)))
    p.U([(i,2) for i in range(5)])
    p.bar([W(3)],[2],name='b3'); p.a(('wread',3),*D(W(7)))
    p.U([(5,2)]+[(i,3) for i in range(4)])
    p.bar([W(4)],[3],name='b4'); p.a(('wread',4),*D(W(8),*XX(6),*XX(7),*XX(8)))
    p.U([(4,3)]+[(i,4) for i in range(4)])
    for g in range(5,9):
        p.bar([W(g)],name=f'b{g}'); p.a(('wread',g))
        p.U([(4,g-1)]+[(i,g) for i in range(4)])
    p.bar(XX(6)+XX(7)+XX(8))
    p.U([(4,8)])
    p.a(('stamp','phB'))
    for i in range(5,9): p.U([(i,g) for g in range(9)])
    return {'init':init,'seq':p.seq}
import gen
def v1few():
    r=gen.plan_v1()
    r['seq']=[t for t in r['seq'] if t[0]!='stamp' or t[1] in('b0','b2','b4','b6','b8','phB')]
    return r
def _probe(init):
    r=gen.plan_v1()
    r['init']=init
    r['seq']=[t for t in r['seq'] if t[0]!='stamp']
    return r
def wt(tok): return ('wait',tok,'a%s%d'%tok)
def probeA():
    xs=[2,3,1,0,4,5,6,7,8]
    init=[W(0),('addr',),W(1),W(2),W(3),W(4),('stamp','iW')]
    for i in xs: init+=XX(i)
    init+=[('stamp','iX')]+[wt(W(g)) for g in range(5)]+[wt(XX(i)[-1]) for i in xs]
    return _probe(init)
def probeB():
    xs=[2,3,1,0,4,5,6,7,8]
    init=[]
    for i in xs: init+=XX(i)
    init+=[('stamp','iX'),W(0),('addr',),W(1),W(2),W(3),W(4),('stamp','iW')]
    init+=[wt(XX(i)[-1]) for i in xs]+[wt(W(g)) for g in range(5)]
    return _probe(init)
def probeC():
    init=[W(0),*XX(2),('stamp','i0'),wt(W(0)),wt(('X',9)),W(1),*XX(3),('stamp','i1'),wt(W(1)),wt(('X',10)),
          W(2),('stamp','i2'),wt(W(2)),*XX(1),('stamp','i3'),wt(('X',8)),W(3),W(4),('stamp','i4'),wt(W(3)),wt(W(4)),('addr',)]
    for i in [0,4,5,6,7,8]: init+=XX(i)
    return _probe(init)
def v3(pf=True):
    p=P()
    init=([('PF',)] if pf else [])+[W(0)]+XX(2)+[W(1)]+XX(3)+[('addr',),W(2)]
    p.bar([W(0)]+XX(2),name='b0'); p.a(('wread',0),*D(*XX(1),W(3)))
    p.U([(2,0)])
    p.bar([W(1)],name='b1'); p.a(('wread',1))
    p.U([(2,1)])
    p.bar(XX(3)+[W(2)],[0],name='b2'); p.a(('wread',2),*D(*XX(0),W(4),W(5)))
    p.U([(3,0),(3,1),(2,2),(3,2)])
    p.bar(XX(1)+[W(3)],[1],name='b3'); p.a(('wread',3),*D(W(6)))
    p.U([(1,0),(1,1),(1,2),(2,3),(3,3)])
    p.bar(XX(0)+[W(4)],[2],name='b4'); p.a(('wread',4),*D(W(7)))
    p.U([(1,3),(0,0),(0,1),(0,2),(0,3),(2,4),(3,4)])
    p.bar([W(5)],[3],name='b5'); p.a(('wread',5),*D(W(8),*XX(4)))
    p.U([(1,4),(0,4),(2,5),(3,5)])
    p.bar([W(6)],name='b6'); p.a(('wread',6),*D(*XX(5)))
    p.U([(1,5),(0,5),(2,6),(3,6)])
    p.bar([W(7)],name='b7'); p.a(('wread',7),*D(*XX(6)))
    p.U([(1,6),(0,6),(2,7),(3,7)])
    p.bar([W(8)]+XX(4),name='b8'); p.a(('wread',8),*D(*XX(7),*XX(8)))
    p.U([(1,7),(0,7),(0,8),(1,8),(2,8),(3,8)])
    p.a(('stamp','phB'))
    p.U([(4,g) for g in range(7)])
    p.bar(XX(5)+XX(6)+XX(7)+XX(8),name='bx')
    for i in range(4,9): p.U([(i,g) for g in range(9)])
    return {'init':init,'seq':p.seq}
def v3n(): return v3(False)
def v4(pf=0):
    p=P()
    init=[W(0)]+XX(2)+([('PF',)] if pf else [])+[W(1)]+XX(3)+[('addr',),W(2)]+XX(1)
    p.bar([W(0)]+XX(2),name='b0'); p.a(('wread',0),('dsall',),*D(W(3),*XX(0),W(4)),('vm',2),('gap',3))
    p.U([(2,0)]); p.a(('vm',2))
    p.bar([W(1)]+XX(3),[0],name='b1'); p.a(('wread',1),*D(W(5)),('gap',4))
    p.U([(3,0),(2,1),(3,1)])
    p.bar([W(2)]+XX(1),[1],name='b2'); p.a(('wread',2),*D(W(6)))
    p.U([(1,0),(1,1),(2,2),(3,2),(1,2)])
    p.bar([W(3)]+XX(0),[2],name='b3'); p.a(('wread',3),*D(W(7)))
    p.U([(0,0),(0,1),(0,2),(2,3),(1,3),(0,3)])
    p.bar([W(4)],[3],name='b4'); p.a(('wread',4),*D(W(8),*XX(4),*XX(5),*XX(6),*XX(7),*XX(8)))
    p.U([(3,3),(2,4),(1,4),(0,4)])
    for g in range(5,9):
        p.bar([W(g)]+(XX(4) if g==8 else []),name=f'b{g}'); p.a(('wread',g))
        p.U([(3,g-1),(0,g),(1,g),(2,g)])
    p.U([(3,8)])
    p.a(('stamp','phB'))
    p.U([(4,g) for g in range(7)])
    p.bar(XX(5)+XX(6)+XX(7)+XX(8),name='bx')
    for i in range(4,9): p.U([(i,g) for g in range(9)])
    return {'init':init,'seq':p.seq}
def v4p(): return v4(1)
def addR(r,keep):
    q=[]
    for t in r['seq']:
        if t[0]=='stamp':
            if t[1] in keep: q+=[t,('stamp','R'+t[1])]
        else: q.append(t)
    r['seq']=q; return r
def v4r(): return addR(v4(),('b0','b2','b4','b6','b8','bx'))
def v5():
    p=P()
    init=[W(0)]+XX(2)+[W(1),('addr',)]+XX(3)+[('addr2',[0,1,2,3]),W(2),('addr2',[4,5,6,7,8])]+XX(1)
    p.bar([W(0)]+XX(2),name='b0'); p.a(('wread',0),('dsall',),*D(W(3),*XX(0),W(4)),('vm',2),('gap',2))
    p.U([(2,0)]); p.a(('vm',1))
    p.bar([W(1)]+XX(3),[0],name='b1'); p.a(('wread',1),*D(W(5)),('gap',3))
    p.U([(3,0),(2,1),(3,1)])
    p.bar([W(2)]+XX(1),[1],name='b2'); p.a(('wread',2),*D(W(6)))
    p.U([(1,0),(1,1),(2,2),(3,2),(1,2)])
    p.bar([W(3)]+XX(0),[2],name='b3'); p.a(('wread',3),*D(W(7)))
    p.U([(0,0),(0,1),(0,2),(2,3),(1,3),(0,3)])
    p.bar([W(4)],[3],name='b4'); p.a(('wread',4),*D(W(8),*XX(4)),('gap',4))
    p.U([(3,3),(2,4),(1,4),(0,4)])
    for g in range(5,9):
        p.bar([W(g)]+(XX(4) if g==8 else []),name=f'b{g}'); p.a(('wread',g))
        if g==6: p.a(*D(*XX(5),*XX(6),*XX(7),*XX(8)),('gap',6))
        p.U([(3,g-1),(0,g),(1,g),(2,g)])
    p.U([(3,8)])
    p.a(('stamp','phB'))
    p.U([(4,g) for g in range(7)])
    p.bar(XX(5)+XX(6)+XX(7)+XX(8),name='bx')
    for i in range(4,9): p.U([(i,g) for g in range(9)])
    return {'init':init,'seq':p.seq}
def v6():
    p=P()
    init=[W(0)]+XX(2)+[('stamp','i0'),('late',),W(1)]+XX(3)+[('stamp','i1'),('addr',)]
    p.bar([W(0)]+XX(2),name='b0'); p.a(('wread',0),('dsall',),*D(W(2),W(3),W(4)),('vm',3),('gap',2))
    p.U([(2,0)])
    p.bar([W(1)]+XX(3),[0],name='b1'); p.a(('wread',1),*D(*XX(1),W(5)),('gap',3))
    p.U([(3,0),(2,1)])
    p.bar([W(2)],[1],name='b2'); p.a(('wread',2),*D(*XX(0),W(6)))
    p.U([(3,1),(2,2)])
    p.bar([W(3)],[2],name='b3'); p.a(('wread',3),*D(W(7)))
    p.U([(3,2),(2,3)])
    p.bar([W(4)],[3],name='b4'); p.a(('wread',4),*D(W(8),*XX(4)))
    p.U([(3,3),(2,4)])
    p.bar(XX(1)+[W(5)],name='b5'); p.a(('wread',5))
    p.U([(3,4),(1,0),(2,5)])
    p.bar(XX(0)+[W(6)]); p.a(('wread',6))
    p.U([(3,5),(1,1),(2,6)])
    p.bar([W(7)]); p.a(('wread',7),*D(*XX(5),*XX(6),*XX(7),*XX(8)),('gap',6))
    p.U([(3,6),(1,2),(2,7)])
    p.bar([W(8)],name='b8'); p.a(('wread',8))
    p.U([(3,7),(1,3),(2,8)])
    p.U([(0,g) for g in range(9)]+[(1,g) for g in range(9)])
    p.bar(XX(4),name='phB')
    p.U([(3,8)]+[(4,g) for g in range(7)])
    p.bar(XX(5)+XX(6)+XX(7)+XX(8),name='bx')
    for i in range(4,9): p.U([(i,g) for g in range(9)])
    return {'init':init,'seq':p.seq}
```

```python
import sys, json
XP = 3456
XROWS = 16
WBASE = XROWS*XP
KGS = 4640
WSLOT = 4*KGS
NSLOT = 5
LDS = WBASE + NSLOT*WSLOT

def gen(cfg):
    stamps = cfg.get('stamps', False)
    L = []
    e = L.append
    vWA, vWS, vWA2, vWS2 = 1, 2, 3, 4
    vX = [5, 6, 7]
    vDW = [8, 9, 10, 11, 12]
    vDX = 13
    vOB, vOS = 14, 15
    vT = 16
    vF = 32
    NF = 4
    vAcc = 48
    vW0 = 132
    def wreg(idx):
        return ('a', 4*idx) if idx < 64 else ('v', vW0+4*(idx-64))
    def rr(kind, b, n): return f"{kind}[{b}:{b+n-1}]"
    def acc(r, t): return vAcc + 12*r + 4*t
    sX, sWt, sO = 4, 8, 12
    sRow = 16
    sWave = 32; sM0X = 33; sM0W = 34; sOut = 35; sTmp = 36; sG = 37; sOrow = 38
    sSt = 40
    nst = [0]; stn = []
    def stamp(name):
        if stamps:
            op = "s_memrealtime" if name.startswith('R') else "s_memtime"
            e(f"{op} s[{sSt+2*nst[0]}:{sSt+2*nst[0]+1}]"); nst[0] += 1; stn.append(name)
    rot = cfg.get('rot', 0)
    groups = [(q % 3, q // 3) for q in range(9)]
    vXg = [200+g for g in range(9)]; sWo = 84
    stamp('Rstart'); stamp('start')
    e("s_load_dwordx4 s[4:7], s[0:1], 0")
    e("s_load_dwordx2 s[12:13], s[0:1], 16")
    if stamps: e(f"s_load_dwordx2 s[96:97], s[0:1], {24 if stamps=='dbg' else 32}")
    e("s_cmp_ge_u32 s2, 224")
    e("s_cbranch_scc1 L_end")
    e("v_lshrrev_b32 v16, 6, v0")
    e("v_and_b32 v0, 63, v0")
    e("v_readfirstlane_b32 s32, v16")
    e("s_and_b32 s36, s2, 7"); e("s_mul_i32 s36, s36, 28"); e("s_lshr_b32 s37, s2, 3"); e("s_add_u32 s36, s36, s37")
    e("s_mul_i32 s37, s36, 4682"); e("s_lshr_b32 s37, s37, 16")
    e("s_mul_i32 s38, s37, 14"); e("s_sub_u32 s36, s36, s38")
    e("s_lshl_b32 s36, s36, 4")
    e("s_mul_i32 s33, s32, 1536")
    e("v_lshlrev_b32 v8, 4, v0")
    e("v_add_u32 v8, s33, v8")
    e("v_lshrrev_b32 v16, 5, v0")
    e("v_mul_u32_u24 v16, 53760, v16")
    e("v_add_u32 v9, v8, v16")
    e("v_add_u32 v10, 53760, v8")
    e(f"v_add_u32 v11, {2*53760}, v8")
    e(f"v_add_u32 v12, {2*53760+4096}, v8")
    e(f"s_mul_i32 s34, s32, {KGS}"); e(f"s_add_u32 s34, s34, {WBASE}")
    e("s_lshl_b32 s33, s32, 6")
    e("v_add_u32 v16, s33, v0")
    e("v_mul_u32_u24 v17, 171, v16")
    e("v_lshrrev_b32 v17, 11, v17")
    e("v_mul_u32_u24 v18, 12, v17")
    e("v_sub_u32 v16, v16, v18")
    e("v_lshrrev_b32 v18, 1, v17")
    e("v_and_b32 v18, 2, v18")
    e("v_xor_b32 v16, v16, v18")
    e("v_add_u32 v17, s36, v17")
    e("v_subrev_u32 v17, 2, v17")
    e("v_add_u32 v18, 224, v17")
    e("v_min_u32 v17, v17, v18")
    e("v_mul_u32_u24 v17, 192, v17")
    e("v_lshl_add_u32 v13, v16, 4, v17")
    e("s_lshl_b32 s33, s32, 10")
    e("s_mul_i32 s18, s38, 43008"); e(f"s_add_u32 s25, s18, {7*43008}")
    if rot:
        e("s_lshr_b32 s39, s2, 3"); e("s_mul_i32 s3, s39, 21846"); e("s_lshr_b32 s3, s3, 16")
        e("s_mul_i32 s93, s3, 3"); e("s_sub_u32 s93, s39, s93")
        e("s_mul_i32 s94, s3, 21846"); e("s_lshr_b32 s94, s94, 16"); e("s_mul_i32 s94, s94, 3"); e("s_sub_u32 s94, s3, s94")
    else:
        e("s_mov_b32 s93, 0"); e("s_mov_b32 s94, 0")
    e("s_mul_i32 s76, s93, 18432"); e("s_mul_i32 s80, s94, 6144"); e(f"s_add_u32 s{sWo}, s76, s80")
    def late():
        for j in (1, 2):
            e(f"s_add_u32 s{76+j}, s{75+j}, 18432"); e(f"s_cmp_eq_u32 s{76+j}, 55296"); e(f"s_cselect_b32 s{76+j}, 0, s{76+j}")
            e(f"s_add_u32 s{80+j}, s{79+j}, 6144"); e(f"s_cmp_eq_u32 s{80+j}, 18432"); e(f"s_cselect_b32 s{80+j}, 0, s{80+j}")
        for g in range(1, 9): e(f"s_add_u32 s{sWo+g}, s{76+g//3}, s{80+g%3}")
        e("s_add_u32 s39, s38, 222"); e("s_sub_u32 s16, s38, 2"); e("s_cmp_eq_u32 s38, 0")
        e("s_cselect_b32 s16, s39, s16"); e("s_mul_i32 s16, s16, 43008"); e("s_add_u32 s17, s16, 43008")
        for i in range(3, 16):
            if i != 9: e(f"s_add_u32 s{16+i}, s18, {(i-2)*43008}")
    e("s_cmp_eq_u32 s32, 3"); e("s_cselect_b32 s98, 0xffffff, -1"); e("s_cselect_b32 s99, 0, -1")
    e("s_waitcnt lgkmcnt(0)")
    stamp('karg')
    e("s_mov_b32 s8, s6"); e("s_mov_b32 s9, s7"); e("s_mov_b32 s10, 165888"); e("s_mov_b32 s11, 0x20000")
    e("s_mov_b32 s6, 9633792"); e("s_mov_b32 s7, 0x20000")
    e("s_mov_b32 s14, 9633792"); e("s_mov_b32 s15, 0x20000")
    vm = [0]
    ds = [0]
    vmdone = {}
    dsdone = {}
    def dmaW(g):
        c, kw = groups[g]; slot = g % NSLOT
        so = kw*18432 + c*6144
        out = []
        sG = sWo + g
        out.append(([f"s_add_u32 m0, s{sM0W}, {slot*WSLOT}", "s_nop 0",
                     f"buffer_load_dwordx4 v8, s[8:11], s{sG} offen lds"], 'vm', None))
        for m in (1, 2, 3):
            out.append(([f"buffer_load_dwordx4 v{8+m}, s[8:11], s{sG} offen offset:{1024*m} lds"], 'vm', None))
        out.append(([f"s_add_u32 m0, s{sM0W}, {slot*WSLOT+4096}", "s_mov_b32 exec_hi, 0",
                     f"buffer_load_dwordx4 v12, s[8:11], s{sG} offen lds", "s_mov_b32 exec_hi, -1"], 'vm', ('W', g)))
        return out
    def dmaX(i):
        return [([f"s_add_u32 m0, s{sM0X}, {i*XP}", "s_mov_b64 exec, s[98:99]",
                  f"buffer_load_dwordx4 v13, s[4:7], s{sRow+i} offen lds", "s_mov_b64 exec, -1"], 'vm', ('X', i))]
    def wread(g):
        slot = g % NSLOT; out = []
        for kh in (2, 1, 0):
            for t in range(3):
                k, b = wreg(g*9 + kh*3 + t)
                for half in range(2):
                    off = slot*WSLOT + kh*1536 + half*768
                    va = vWA if t < 2 else vWS
                    if t == 1: off += 32
                    if slot >= 3: off -= 3*WSLOT; va += 2
                    out.append(([f"ds_read_b64_tr_b16 {rr(k, b+2*half, 2)}, v{va} offset:{off}"], 'ds', ('w', g, kh, t) if half else None))
        return out
    def put(item):
        lines, kind, tag = item
        for l in lines: e(l)
        if kind == 'vm':
            vm[0] += 1
            if tag: vmdone[tag] = vm[0]
        elif kind == 'ds':
            ds[0] += 1
            if tag: dsdone[tag] = ds[0]
    dswaited = [0]
    def waitds(tag):
        n = dsdone[tag]
        if n > dswaited[0]:
            e(f"s_waitcnt lgkmcnt({min(15, ds[0]-n)})"); dswaited[0] = max(n, ds[0]-15)
    plan = cfg['plan']
    first = True
    for tok in plan['init']:
        if tok[0] == 'W':
            for it in dmaW(tok[1]): put(it)
        elif tok[0] == 'X':
            for it in dmaX(tok[1]): put(it)
        elif tok[0] == 'stamp': stamp(tok[1])
        elif tok[0] == 'PF':
            e("s_lshr_b32 s39, s2, 3"); e("s_lshl_b32 s39, s39, 2"); e("s_add_u32 s39, s39, s32")
            e("s_mul_i32 s3, s39, 1821"); e("s_lshr_b32 s3, s3, 16"); e("s_mul_i32 s3, s3, 36"); e("s_sub_u32 s39, s39, s3")
            e("s_mul_i32 s39, s39, 4608")
            e("v_mul_u32_u24 v20, 72, v0"); e("v_and_b32 v20, 0xfffffffc, v20")
            put(([f"buffer_load_dword v21, v20, s[8:11], s39 offen"], 'vm', None))
        elif tok[0] == 'wait':
            e(f"s_waitcnt vmcnt({vm[0]-vmdone[tuple(tok[1])]})"); stamp(tok[2])
        elif tok[0] == 'addr':
            e("v_lshrrev_b32 v16, 4, v0")
            e("v_and_b32 v17, 15, v0")
            e("s_and_b32 s39, s32, 1")
            e("s_lshr_b32 s3, s32, 1")
            e(f"v_mul_u32_u24 v1, {KGS}, v16")
            e("v_bfe_u32 v18, v0, 2, 2"); e("v_mul_u32_u24 v18, 192, v18"); e("v_add_u32 v1, v1, v18")
            e("v_and_b32 v18, 3, v0"); e("v_lshl_add_u32 v1, v18, 3, v1")
            e(f"v_add_u32 v1, {WBASE}, v1")
            e("s_lshl_b32 s35, s39, 5"); e("s_add_u32 s35, s35, 64")
            e("v_add_u32 v2, s35, v1")
            e("s_lshl_b32 s39, s39, 7")
            e("v_add_u32 v1, s39, v1")
            e(f"v_add_u32 v3, {3*WSLOT}, v1"); e(f"v_add_u32 v4, {3*WSLOT}, v2")
            e("v_mul_u32_u24 v14, 192, v17")
            e("v_lshl_add_u32 v15, v16, 3, v14"); e("v_add_u32 v15, s35, v15")
            e("v_and_b32 v18, 1, v16"); e("v_lshl_add_u32 v14, v18, 5, v14")
            e("v_lshrrev_b32 v18, 1, v16"); e("v_lshl_add_u32 v14, v18, 4, v14"); e("v_add_u32 v14, s39, v14")
            e(f"s_mul_i32 s39, s3, {7*XP}")
            e("s_sub_u32 s93, 2, s93")
            for j in range(3):
                e("v_add_u32 v18, s93, v17")
                if j < 2: e("s_sub_u32 s93, s93, 1"); e("s_cselect_b32 s93, 2, s93")
                e("v_lshrrev_b32 v19, 1, v18"); e("v_and_b32 v19, 2, v19"); e("v_xor_b32 v19, v19, v16")
                e("v_mul_u32_u24 v18, 192, v18"); e(f"v_lshl_add_u32 v{vX[j]}, v19, 4, v18")
            for j in range(3):
                e(f"s_lshr_b32 s{80+j}, s{80+j}, 11"); e(f"s_mul_i32 s{80+j}, s{80+j}, 21"); e(f"s_add_u32 s{80+j}, s{80+j}, 63");
                e(f"s_and_b32 s{80+j}, s{80+j}, 0xc0"); e(f"s_add_u32 s{80+j}, s{80+j}, s39")
            for g in range(9): e(f"v_add_u32 v{vXg[g]}, s{80+g%3}, v{vX[g//3]}")
            e("s_mul_i32 s3, s3, 7"); e("s_add_u32 s3, s3, s38"); e("s_mul_i32 s3, s3, 224"); e("s_add_u32 s3, s3, s36")
            e("s_mul_i32 s35, s3, 192")
        elif tok[0] == 'late': late()
        elif tok[0] == 'addr2':
            for g in tok[1]:
                e(f"s_cmp_ge_u32 s{sWo+g}, 18432"); e("s_cselect_b64 vcc, -1, 0"); e(f"s_cselect_b32 s3, 18432, 0")
                e(f"v_cndmask_b32 v{vXg[g]}, v{vX[0]}, v{vX[1]}, vcc")
                e(f"s_cmp_ge_u32 s{sWo+g}, 36864"); e("s_cselect_b64 vcc, -1, 0"); e(f"s_cselect_b32 s3, 36864, s3")
                e(f"v_cndmask_b32 v{vXg[g]}, v{vXg[g]}, v{vX[2]}, vcc")
                e(f"s_sub_u32 s3, s{sWo+g}, s3"); e("s_lshr_b32 s3, s3, 12"); e("s_add_u32 s3, s3, 1"); e("s_lshr_b32 s3, s3, 1"); e("s_lshl_b32 s3, s3, 6")
                e(f"v_add_u32 v{vXg[g]}, s3, v{vXg[g]}")
    stamp('issued')
    seq = plan['seq']
    units = [t for t in seq if t[0] == 'u']
    assert sorted((t[1], t[2]) for t in units) == [(i, g) for i in range(9) for g in range(9)]
    remaining = {r: 81 for r in range(7)}
    started = set()
    side = []
    uidx = [0]
    fr_issued = [0]
    barpos = [0]; ubar = []; nb = 0
    for t in seq:
        if t[0] == 'bar': nb += 1
        if t[0] == 'u': ubar.append(nb)
    xavail = {}; nb = 0
    for t in seq:
        if t[0] == 'bar':
            nb += 1
            for tg in t[1]:
                if tg[0] == 'X': xavail[tg[1]] = nb
    def xbar(i): return max(xavail[i], xavail[i+7])
    curbar = [0]
    PF = cfg.get('pf', 2)
    def frag_item(n):
        _, i, g = units[n]; c, kw = groups[g]
        return ([f"ds_read_b128 v[{vF+4*(n%NF)}:{vF+4*(n%NF)+3}], v{vXg[g]} offset:{i*XP}"], 'ds', ('f', n))
    def try_frags():
        out = []
        while fr_issued[0] < len(units) and fr_issued[0] <= uidx[0]+PF and xbar(units[fr_issued[0]][1]) <= curbar[0]:
            out.append(frag_item(fr_issued[0])); fr_issued[0] += 1
        return out
    pend_store = []
    nm = [0]
    tset = [0]
    def store_items(r):
        T = vT + 8*(tset[0] & 1); tset[0] += 1
        a = lambda t: acc(r, t)
        cv = lambda d, s: f"v_cvt_pk_bf16_f32 v{d}, v{s}, v{s+1}"
        nt = cfg.get('stflag', '')
        return [([cv(T, a(0)), cv(T+1, a(0)+2)], 'v', None), ([cv(T+2, a(1)), cv(T+3, a(1)+2)], 'v', None),
                ([cv(T+4, a(2)), cv(T+5, a(2)+2)], 'v', None),
                ([f"s_add_u32 s{sOrow}, s{sOut}, {r*43008}", f"v_permlane16_swap_b32 v{T}, v{T+2}"], 'v', None),
                ([f"v_permlane16_swap_b32 v{T+1}, v{T+3}"], 'v', None),
                ([f"buffer_store_dwordx2 v[{T+4}:{T+5}], v{vOS}, s[12:15], s{sOrow} offen {nt}"], 'vm', None),
                ([f"buffer_store_dwordx4 v[{T}:{T+3}], v{vOB}, s[12:15], s{sOrow} offen {nt}"], 'vm', None)]
    dq = []; vq = []; sq = []
    def flush(q, pred):
        while q and pred(): put(q.pop(0))
    lastvm = [-99]
    vmgap = [cfg.get('vmgap', 4)]
    for t in seq:
        if t[0] == 'stamp': stamp(t[1])
        elif t[0] == 'gap': vmgap[0] = t[1]
        elif t[0] == 'vm':
            for _ in range(t[1]):
                if vq: put(vq.pop(0))
            lastvm[0] = nm[0]
        elif t[0] == 'dsall': flush(dq, lambda: True)
        elif t[0] == 'bar':
            for g in t[2] if len(t) > 2 else []:
                flush(dq, lambda: ('w', g, 0, 2) not in dsdone)
                waitds(('w', g, 0, 2))
            for tg in t[1]: flush(vq, lambda: tuple(tg) not in vmdone)
            need = max(vmdone[tuple(tg)] for tg in t[1]) if t[1] else 0
            if need: e(f"s_waitcnt vmcnt({vm[0]-need})")
            e("s_barrier"); curbar[0] += 1
            for it in try_frags(): put(it)
        elif t[0] == 'wread':
            dq.extend(wread(t[1]))
        elif t[0] == 'dma':
            vq.extend(dmaW(t[1][1]) if t[1][0] == 'W' else dmaX(t[1][1]))
        elif t[0] == 'u':
            n = uidx[0]; _, i, g = t
            assert fr_issued[0] > n, (t, "frag not issued")
            for kh in (2, 1, 0):
                r = i - 2 + kh
                if not (0 <= r <= 6): continue
                for tt in range(3):
                    tag = ('w', g, kh, tt)
                    flush(dq, lambda: tag not in dsdone)
                    waitds(tag); waitds(('f', n))
                    k, b = wreg(g*9 + kh*3 + tt)
                    A = acc(r, tt)
                    cin = f"v[{A}:{A+3}]" if (r, tt) in started else "0"
                    started.add((r, tt))
                    e(f"v_mfma_f32_16x16x32_bf16 v[{A}:{A+3}], {rr(k, b, 4)}, v[{vF+4*(n%NF)}:{vF+4*(n%NF)+3}], {cin}")
                    nm[0] += 1
                    if pend_store and not sq and nm[0] - pend_store[0][1] >= 9:
                        sq.extend(store_items(pend_store.pop(0)[0]))
                    if vq and nm[0] - lastvm[0] >= vmgap[0]:
                        put(vq.pop(0)); lastvm[0] = nm[0]
                    elif dq:
                        for _ in range(cfg.get('dsrate', 2)):
                            if dq: put(dq.pop(0))
                    elif sq:
                        if sq[0][1] != 'vm' or nm[0] - lastvm[0] >= cfg.get('stgap', 2):
                            if sq[0][1] == 'vm': lastvm[0] = nm[0]
                            put(sq.pop(0))
                remaining[r] -= 3
                if remaining[r] == 0: pend_store.append((r, nm[0]))
            uidx[0] += 1
            for it in try_frags(): put(it)
    stamp('mfma_done')
    assert not vq and not dq
    if sq: e('s_nop 1')
    while sq: put(sq.pop(0))
    if pend_store: e("s_nop 7")
    for r, _ in pend_store:
        its = store_items(r)
        for j, it in enumerate(its):
            if j == 3: e("s_nop 1")
            put(it)
    if stamps:
        stamp('stores_issued')
        e("s_waitcnt vmcnt(0)")
        stamp('end'); stamp('Rend')
        e("s_getreg_b32 s39, hwreg(HW_REG_XCC_ID)")
        e("s_waitcnt lgkmcnt(0)")
        e("s_mov_b32 s8, s96"); e("s_mov_b32 s9, s97"); e("s_mov_b32 s10, 0x100000")
        if stamps == 'dbg':
            e("s_mov_b32 s10, 256"); e("v_mov_b32 v1, 0"); e("s_mov_b64 exec, 1")
            e(f"s_not_b32 s3, s{sSt}"); e("v_mov_b32 v2, s3"); e("buffer_atomic_umax v2, v1, s[8:11], 0 offen")
            e(f"v_mov_b32 v3, s{sSt+2*(nst[0]-1)}"); e("buffer_atomic_umax v3, v1, s[8:11], 0 offen offset:4")
            e(f"v_mov_b32 v4, s{sSt}"); e("buffer_atomic_umax v4, v1, s[8:11], 0 offen offset:8")
            for j in range(2, nst[0]-1):
                if j+1 > 15: break
                e(f"s_sub_u32 s3, s{sSt+2*j}, s{sSt+2}"); e(f"v_mov_b32 v{5+j}, s3")
                e(f"buffer_atomic_umax v{5+j}, v1, s[8:11], 0 offen offset:{4*(j+1)}")
            e("s_endpgm")
        e("s_lshl_b32 s3, s2, 2"); e("s_add_u32 s3, s3, s32"); e("s_lshl_b32 s3, s3, 8")
        e("v_mov_b32 v1, 0"); e("v_mov_b32 v2, s39")
        e("buffer_store_dword v2, v1, s[8:11], s3 offen offset:252")
        for j in range(nst[0]):
            e(f"v_mov_b32 v2, s{sSt+2*j}"); e(f"v_mov_b32 v3, s{sSt+2*j+1}")
            e(f"buffer_store_dwordx2 v[2:3], v1, s[8:11], s3 offen offset:{8*j}")
            e("s_nop 1")
    e("L_end:")
    e("s_endpgm")
    hdr = open('standalone__fft_conv__vision.s.ref').read().split('\n')
    out = []
    for l in hdr:
        if l.startswith('; @launch'): out.append(f"; @launch grid=(224,1,1) block=(256,1,1) lds={LDS}"); continue
        out.append(l)
        if l.startswith('standalone__fft_conv__vision_kernel:'): break
    out += ["    "+l if not l.endswith(':') else l for l in L]
    out += """.section .rodata,"a"
.p2align 6
.amdhsa_kernel standalone__fft_conv__vision_kernel
  .amdhsa_next_free_vgpr 512
  .amdhsa_next_free_sgpr 102
  .amdhsa_accum_offset 256
  .amdhsa_group_segment_fixed_size 0
  .amdhsa_kernarg_size 40
  .amdhsa_user_sgpr_count 2
  .amdhsa_user_sgpr_kernarg_segment_ptr 1
  .amdhsa_system_sgpr_workgroup_id_x 1
.end_amdhsa_kernel""".split('\n')
    return '\n'.join(out)+'\n', stn

def plan_v1():
    init = [('W',0),('X',0),('X',7),('X',1),('X',8),('addr',),('X',2),('X',9),('X',3),('X',10),('W',1),('X',4),('X',11),('W',2),
            ('X',5),('X',12),('W',3),('X',6),('X',13),('W',4),('X',14),('X',15)]
    seq = []
    done = set()
    def U(lst):
        for i, g in lst:
            if (i, g) not in done: done.add((i, g)); seq.append(('u', i, g))
    seq += [('bar', [('W',0),('X',0),('X',7),('X',1),('X',8),('X',2),('X',9),('X',3),('X',10)]), ('stamp','b0'), ('wread',0)]
    U([(0,0),(1,0),(2,0)])
    seq += [('bar', [('W',1),('X',4),('X',11)], [0]), ('stamp','b1'), ('wread',1), ('dma',('W',5))]
    U([(3,0),(4,0),(0,1),(1,1),(2,1)])
    seq += [('bar', [('W',2),('X',5),('X',12)], [1]), ('stamp','b2'), ('wread',2), ('dma',('W',6))]
    U([(3,1),(4,1),(0,2),(1,2),(2,2)])
    seq += [('bar', [('W',3),('X',6),('X',13)], [2]), ('stamp','b3'), ('wread',3), ('dma',('W',7))]
    U([(3,2),(4,2),(0,3),(1,3),(2,3)])
    seq += [('bar', [('W',4),('X',14),('X',15)], [3]), ('stamp','b4'), ('wread',4), ('dma',('W',8))]
    U([(3,3),(4,3),(0,4),(1,4),(2,4)])
    for g in range(5, 9):
        seq += [('bar', [('W',g)]), ('stamp',f'b{g}'), ('wread',g)]
        U([(3,g-1),(4,g-1),(0,g),(1,g),(2,g)])
    U([(3,8),(4,8)])
    seq += [('stamp','phB')]
    for i in range(5, 9): U([(i, g) for g in range(9)])
    return {'init': init, 'seq': seq}

if __name__ == '__main__':
    cfg = {'plan': plan_v1()}
    for a in sys.argv[2:]:
        k, v = a.split('='); cfg[k] = json.loads(v) if v and v[0] in '0123456789[tf' else v
    if 'planf' in cfg:
        import plans; cfg['plan'] = getattr(plans, cfg['planf'])()
    s, stn = gen(cfg)
    open(sys.argv[1], 'w').write(s)
    print(stn)
```

```python
class P:
    def __init__(s): s.seq=[]; s.done=set()
    def U(s,lst):
        for i,g in lst:
            if (i,g) not in s.done: s.done.add((i,g)); s.seq.append(('u',i,g))
    def bar(s,tags,war=[],name=None):
        s.seq.append(('bar',tags,war))
        if name: s.seq.append(('stamp',name))
    def a(s,*t): s.seq += list(t)
W=lambda g:('W',g)
def XX(i): return [('X',i),('X',i+7)] if i not in (7,8) else [('X',i+7)]
def D(*toks): return [('dma',t) for t in toks]

def probe():
    r=v2()
    init=[W(0),('stamp','i0')]+XX(0)+XX(1)+[('addr',)]+XX(2)+XX(3)+XX(4)+XX(5)+[W(1),('stamp','i1'),
      ('wait',W(0),'aW0'),('wait',('X',9),'aX2'),('wait',('X',12),'aX5'),('wait',W(1),'aW1')]
    r['init']=init
    r['seq']=[t for t in r['seq'] if t[0]!='stamp' or t[1] in('b2','b4','b6','b8','phB')]
    return r

def v2():
    p=P()
    init=[W(0)]+XX(0)+XX(1)+[('addr',)]+XX(2)+XX(3)+XX(4)+XX(5)+[W(1)]
    p.bar([W(0)]+XX(0)+XX(1)+XX(2),name='b0'); p.a(('wread',0),*D(W(2)))
    p.U([(0,0),(1,0),(2,0)])
    p.bar(XX(3)+XX(4)+XX(5),name='b0x'); p.a(*D(W(3)))
    p.U([(3,0),(4,0),(5,0)])
    p.bar([W(1)],[0],name='b1'); p.a(('wread',1),*D(W(4),W(5)))
    p.U([(i,1) for i in range(6)])
    p.bar([W(2)],[1],name='b2'); p.a(('wread',2),*D(W(6)))
    p.U([(i,2) for i in range(5)])
    p.bar([W(3)],[2],name='b3'); p.a(('wread',3),*D(W(7)))
    p.U([(5,2)]+[(i,3) for i in range(4)])
    p.bar([W(4)],[3],name='b4'); p.a(('wread',4),*D(W(8),*XX(6),*XX(7),*XX(8)))
    p.U([(4,3)]+[(i,4) for i in range(4)])
    for g in range(5,9):
        p.bar([W(g)],name=f'b{g}'); p.a(('wread',g))
        p.U([(4,g-1)]+[(i,g) for i in range(4)])
    p.bar(XX(6)+XX(7)+XX(8))
    p.U([(4,8)])
    p.a(('stamp','phB'))
    for i in range(5,9): p.U([(i,g) for g in range(9)])
    return {'init':init,'seq':p.seq}
import gen
def v1few():
    r=gen.plan_v1()
    r['seq']=[t for t in r['seq'] if t[0]!='stamp' or t[1] in('b0','b2','b4','b6','b8','phB')]
    return r
def _probe(init):
    r=gen.plan_v1()
    r['init']=init
    r['seq']=[t for t in r['seq'] if t[0]!='stamp']
    return r
def wt(tok): return ('wait',tok,'a%s%d'%tok)
def probeA():
    xs=[2,3,1,0,4,5,6,7,8]
    init=[W(0),('addr',),W(1),W(2),W(3),W(4),('stamp','iW')]
    for i in xs: init+=XX(i)
    init+=[('stamp','iX')]+[wt(W(g)) for g in range(5)]+[wt(XX(i)[-1]) for i in xs]
    return _probe(init)
def probeB():
    xs=[2,3,1,0,4,5,6,7,8]
    init=[]
    for i in xs: init+=XX(i)
    init+=[('stamp','iX'),W(0),('addr',),W(1),W(2),W(3),W(4),('stamp','iW')]
    init+=[wt(XX(i)[-1]) for i in xs]+[wt(W(g)) for g in range(5)]
    return _probe(init)
def probeC():
    init=[W(0),*XX(2),('stamp','i0'),wt(W(0)),wt(('X',9)),W(1),*XX(3),('stamp','i1'),wt(W(1)),wt(('X',10)),
          W(2),('stamp','i2'),wt(W(2)),*XX(1),('stamp','i3'),wt(('X',8)),W(3),W(4),('stamp','i4'),wt(W(3)),wt(W(4)),('addr',)]
    for i in [0,4,5,6,7,8]: init+=XX(i)
    return _probe(init)
def v3(pf=True):
    p=P()
    init=([('PF',)] if pf else [])+[W(0)]+XX(2)+[W(1)]+XX(3)+[('addr',),W(2)]
    p.bar([W(0)]+XX(2),name='b0'); p.a(('wread',0),*D(*XX(1),W(3)))
    p.U([(2,0)])
    p.bar([W(1)],name='b1'); p.a(('wread',1))
    p.U([(2,1)])
    p.bar(XX(3)+[W(2)],[0],name='b2'); p.a(('wread',2),*D(*XX(0),W(4),W(5)))
    p.U([(3,0),(3,1),(2,2),(3,2)])
    p.bar(XX(1)+[W(3)],[1],name='b3'); p.a(('wread',3),*D(W(6)))
    p.U([(1,0),(1,1),(1,2),(2,3),(3,3)])
    p.bar(XX(0)+[W(4)],[2],name='b4'); p.a(('wread',4),*D(W(7)))
    p.U([(1,3),(0,0),(0,1),(0,2),(0,3),(2,4),(3,4)])
    p.bar([W(5)],[3],name='b5'); p.a(('wread',5),*D(W(8),*XX(4)))
    p.U([(1,4),(0,4),(2,5),(3,5)])
    p.bar([W(6)],name='b6'); p.a(('wread',6),*D(*XX(5)))
    p.U([(1,5),(0,5),(2,6),(3,6)])
    p.bar([W(7)],name='b7'); p.a(('wread',7),*D(*XX(6)))
    p.U([(1,6),(0,6),(2,7),(3,7)])
    p.bar([W(8)]+XX(4),name='b8'); p.a(('wread',8),*D(*XX(7),*XX(8)))
    p.U([(1,7),(0,7),(0,8),(1,8),(2,8),(3,8)])
    p.a(('stamp','phB'))
    p.U([(4,g) for g in range(7)])
    p.bar(XX(5)+XX(6)+XX(7)+XX(8),name='bx')
    for i in range(4,9): p.U([(i,g) for g in range(9)])
    return {'init':init,'seq':p.seq}
def v3n(): return v3(False)
def v4(pf=0):
    p=P()
    init=[W(0)]+XX(2)+([('PF',)] if pf else [])+[W(1)]+XX(3)+[('addr',),W(2)]+XX(1)
    p.bar([W(0)]+XX(2),name='b0'); p.a(('wread',0),('dsall',),*D(W(3),*XX(0),W(4)),('vm',2),('gap',3))
    p.U([(2,0)]); p.a(('vm',2))
    p.bar([W(1)]+XX(3),[0],name='b1'); p.a(('wread',1),*D(W(5)),('gap',4))
    p.U([(3,0),(2,1),(3,1)])
    p.bar([W(2)]+XX(1),[1],name='b2'); p.a(('wread',2),*D(W(6)))
    p.U([(1,0),(1,1),(2,2),(3,2),(1,2)])
    p.bar([W(3)]+XX(0),[2],name='b3'); p.a(('wread',3),*D(W(7)))
    p.U([(0,0),(0,1),(0,2),(2,3),(1,3),(0,3)])
    p.bar([W(4)],[3],name='b4'); p.a(('wread',4),*D(W(8),*XX(4),*XX(5),*XX(6),*XX(7),*XX(8)))
    p.U([(3,3),(2,4),(1,4),(0,4)])
    for g in range(5,9):
        p.bar([W(g)]+(XX(4) if g==8 else []),name=f'b{g}'); p.a(('wread',g))
        p.U([(3,g-1),(0,g),(1,g),(2,g)])
    p.U([(3,8)])
    p.a(('stamp','phB'))
    p.U([(4,g) for g in range(7)])
    p.bar(XX(5)+XX(6)+XX(7)+XX(8),name='bx')
    for i in range(4,9): p.U([(i,g) for g in range(9)])
    return {'init':init,'seq':p.seq}
def v4p(): return v4(1)
def addR(r,keep):
    q=[]
    for t in r['seq']:
        if t[0]=='stamp':
            if t[1] in keep: q+=[t,('stamp','R'+t[1])]
        else: q.append(t)
    r['seq']=q; return r
def v4r(): return addR(v4(),('b0','b2','b4','b6','b8','bx'))
def v5():
    p=P()
    init=[W(0)]+XX(2)+[W(1),('addr',)]+XX(3)+[('addr2',[0,1,2,3]),W(2),('addr2',[4,5,6,7,8])]+XX(1)
    p.bar([W(0)]+XX(2),name='b0'); p.a(('wread',0),('dsall',),*D(W(3),*XX(0),W(4)),('vm',2),('gap',2))
    p.U([(2,0)]); p.a(('vm',1))
    p.bar([W(1)]+XX(3),[0],name='b1'); p.a(('wread',1),*D(W(5)),('gap',3))
    p.U([(3,0),(2,1),(3,1)])
    p.bar([W(2)]+XX(1),[1],name='b2'); p.a(('wread',2),*D(W(6)))
    p.U([(1,0),(1,1),(2,2),(3,2),(1,2)])
    p.bar([W(3)]+XX(0),[2],name='b3'); p.a(('wread',3),*D(W(7)))
    p.U([(0,0),(0,1),(0,2),(2,3),(1,3),(0,3)])
    p.bar([W(4)],[3],name='b4'); p.a(('wread',4),*D(W(8),*XX(4)),('gap',4))
    p.U([(3,3),(2,4),(1,4),(0,4)])
    for g in range(5,9):
        p.bar([W(g)]+(XX(4) if g==8 else []),name=f'b{g}'); p.a(('wread',g))
        if g==6: p.a(*D(*XX(5),*XX(6),*XX(7),*XX(8)),('gap',6))
        p.U([(3,g-1),(0,g),(1,g),(2,g)])
    p.U([(3,8)])
    p.a(('stamp','phB'))
    p.U([(4,g) for g in range(7)])
    p.bar(XX(5)+XX(6)+XX(7)+XX(8),name='bx')
    for i in range(4,9): p.U([(i,g) for g in range(9)])
    return {'init':init,'seq':p.seq}
def v6():
    p=P()
    init=[W(0)]+XX(2)+[('stamp','i0'),('late',),W(1)]+XX(3)+[('stamp','i1'),('addr',)]
    p.bar([W(0)]+XX(2),name='b0'); p.a(('wread',0),('dsall',),*D(W(2),W(3),W(4)),('vm',3),('gap',2))
    p.U([(2,0)])
    p.bar([W(1)]+XX(3),[0],name='b1'); p.a(('wread',1),*D(*XX(1),W(5)),('gap',3))
    p.U([(3,0),(2,1)])
    p.bar([W(2)],[1],name='b2'); p.a(('wread',2),*D(*XX(0),W(6)))
    p.U([(3,1),(2,2)])
    p.bar([W(3)],[2],name='b3'); p.a(('wread',3),*D(W(7)))
    p.U([(3,2),(2,3)])
    p.bar([W(4)],[3],name='b4'); p.a(('wread',4),*D(W(8),*XX(4)))
    p.U([(3,3),(2,4)])
    p.bar(XX(1)+[W(5)],name='b5'); p.a(('wread',5))
    p.U([(3,4),(1,0),(2,5)])
    p.bar(XX(0)+[W(6)]); p.a(('wread',6))
    p.U([(3,5),(1,1),(2,6)])
    p.bar([W(7)]); p.a(('wread',7),*D(*XX(5),*XX(6),*XX(7),*XX(8)),('gap',6))
    p.U([(3,6),(1,2),(2,7)])
    p.bar([W(8)],name='b8'); p.a(('wread',8))
    p.U([(3,7),(1,3),(2,8)])
    p.U([(0,g) for g in range(9)]+[(1,g) for g in range(9)])
    p.bar(XX(4),name='phB')
    p.U([(3,8)]+[(4,g) for g in range(7)])
    p.bar(XX(5)+XX(6)+XX(7)+XX(8),name='bx')
    for i in range(4,9): p.U([(i,g) for g in range(9)])
    return {'init':init,'seq':p.seq}
def v6t():
    r=v6(); r['init']=XX(2)+[('TX','x'),W(0),('stamp','i0'),('late',),W(1)]+XX(3)+[('TX','o'),('stamp','i1'),('addr',)]
    return r
def keep(r,k):
    r['seq']=[t for t in r['seq'] if t[0]!='stamp' or t[1] in k]; return r
def v6few(): return keep(v6(),('b0','b1','b4','b5','b8','bx'))
def v7():
    p=P()
    init=XX(2)+[W(0),('late',)]+XX(3)+[W(1)]+XX(1)+[('addr',)]
    p.bar([W(0)]+XX(2),name='b0'); p.a(('wread',0),('dsall',),*D(W(2),*XX(0),W(3),W(4)),('vm',2),('gap',2),('stag',0))
    p.U([(2,0)])
    p.bar([W(1)]+XX(3),[0],name='b1'); p.a(('wread',1),*D(W(5)),('gap',4),('stag',1))
    p.U([(3,0),(2,1),(3,1)])
    p.bar([W(2)]+XX(1),[1],name='b2'); p.a(('wread',2),*D(W(6)))
    p.U([(1,0),(1,1),(2,2)])
    p.bar([W(3)]+XX(0),[2],name='b3'); p.a(('wread',3),*D(W(7)))
    p.U([(3,2),(1,2),(0,0),(0,1),(0,2)])
    p.bar([W(4)],[3],name='b4'); p.a(('wread',4),*D(W(8),*XX(4)))
    p.U([(2,3),(3,3),(1,3)])
    for g in range(5,9):
        p.bar([W(g)],name=f'b{g}'); p.a(('wread',g))
        if g==7: p.a(*D(*XX(5),*XX(6),*XX(7),*XX(8)),('gap',8))
        p.U([(0,g-2),(2,g-1),(3,g-1),(1,g-1)])
    p.bar(XX(4),name='phB')
    p.U([(0,7),(0,8),(1,8),(2,8),(3,8)]+[(4,g) for g in range(6)])
    p.bar(XX(5)+XX(6)+XX(7)+XX(8),name='bx')
    for i in range(4,9): p.U([(i,g) for g in range(9)])
    return {'init':init,'seq':p.seq}
def v7h():
    r=v7(); r['init']=r['init']+[('hop',)]; return r
def v6h():
    r=v6(); r['init']=r['init']+[('hop',)]; return r
def v7e():
    r=v7(); i=r['init']; r['init']=i[:-1]+[('hop',),i[-1]]; return r
def hop_at(r,n):
    i=r['init']; r['init']=i[:n]+[('hop',)]+i[n:]; return r
def v7f(): return hop_at(v7(),3)
def v7g(): return hop_at(v7(),7)
def v6f(): return hop_at(v6(),3)
def v6g(): return hop_at(v6(),8)
def v8(extra=1,gap=4):
    p=P()
    init=XX(2)+[W(0),('hop',),('late',)]+XX(3)+[W(1)]+XX(1)+[('addr',)]+([W(2)]+XX(0) if extra else [])
    p.bar([W(0)]+XX(2),name='b0'); p.a(('wread',0),('dsall',),*D(*([] if extra else [W(2)]+XX(0)),W(3),W(4)),('vm',2),('gap',2))
    p.U([(2,0)]); p.a(('vm',4))
    p.bar([W(1)]+XX(3),[0],name='b1'); p.a(('wread',1),*D(W(5)),('gap',gap),('dsr',2))
    p.U([(3,0),(2,1),(3,1)])
    p.bar([W(2),W(3)]+XX(1)+XX(0),[1],name='b2'); p.a(('wread',2),('wread',3),*D(W(6)))
    p.U([(1,0)]); p.a(('dsr',1)); p.U([(1,1),(0,0),(0,1),(2,2),(3,2),(1,2),(0,2)])
    p.bar([W(4),W(5)],[2,3],name='b3'); p.a(('wread',4),('wread',5),*D(W(7),W(8),*XX(4)))
    p.U([(i,g) for g in (3,4) for i in (2,3,1,0)])
    p.bar([W(6),W(7)],name='b4'); p.a(('wread',6),('wread',7),*D(*XX(5),*XX(6),*XX(7),*XX(8)),('gap',6))
    p.U([(i,g) for g in (5,6) for i in (2,3,1,0)])
    p.bar([W(8)]+XX(4),name='b5'); p.a(('wread',8))
    p.U([(2,7),(3,7),(1,7),(0,7),(0,8),(1,8),(2,8),(3,8)])
    p.a(('stamp','phB'))
    p.U([(4,g) for g in range(6)])
    p.bar(XX(5)+XX(6)+XX(7)+XX(8),name='bx')
    for i in range(4,9): p.U([(i,g) for g in range(9)])
    return {'init':init,'seq':p.seq}
def v8b(): return v8(0)
def v8c(): return v8(1,3)
```

```python
import sys, json
XP = 3456
XROWS = 16
WBASE = XROWS*XP
KGS = 4640
WSLOT = 4*KGS
NSLOT = 5
LDS = WBASE + NSLOT*WSLOT

def gen(cfg):
    stamps = cfg.get('stamps', False)
    L = []
    e = L.append
    vWA, vWS, vWA2, vWS2 = 1, 2, 3, 4
    vX = [5, 6, 7]
    vDW = [8, 9, 10, 11, 12]
    vDX = 13
    vOB, vOS = 14, 15
    vT = 16
    vF = 32
    NF = 4
    vAcc = 48
    vW0 = 132
    def wreg(idx):
        return ('a', 4*idx) if idx < 64 else ('v', vW0+4*(idx-64))
    def rr(kind, b, n): return f"{kind}[{b}:{b+n-1}]"
    def acc(r, t): return vAcc + 12*r + 4*t
    sX, sWt, sO = 4, 8, 12
    sRow = 16
    sWave = 32; sM0X = 33; sM0W = 34; sOut = 35; sTmp = 36; sG = 37; sOrow = 38
    sSt = 40
    nst = [0]; stn = []
    def stamp(name):
        if stamps:
            op = "s_memrealtime" if name.startswith('R') else "s_memtime"
            e(f"{op} s[{sSt+2*nst[0]}:{sSt+2*nst[0]+1}]"); nst[0] += 1; stn.append(name)
    rot = cfg.get('rot', 0)
    groups = [(q % 3, q // 3) for q in range(9)]
    vXg = [200+g for g in range(9)]; sWo = 84
    stamp('Rstart'); stamp('start')
    e("s_load_dwordx4 s[4:7], s[0:1], 0")
    e("s_load_dwordx2 s[12:13], s[0:1], 16")
    if stamps: e(f"s_load_dwordx2 s[96:97], s[0:1], {24 if stamps=='dbg' else 32}")
    e("s_cmp_ge_u32 s2, 224")
    e("s_cbranch_scc1 L_end")
    e("v_lshrrev_b32 v16, 6, v0")
    e("v_and_b32 v0, 63, v0")
    e("v_readfirstlane_b32 s32, v16")
    e("s_and_b32 s36, s2, 7"); e("s_mul_i32 s36, s36, 28"); e("s_lshr_b32 s37, s2, 3"); e("s_add_u32 s36, s36, s37")
    e("s_mul_i32 s37, s36, 4682"); e("s_lshr_b32 s37, s37, 16")
    e("s_mul_i32 s38, s37, 14"); e("s_sub_u32 s36, s36, s38")
    e("s_lshl_b32 s36, s36, 4")
    e("s_mul_i32 s33, s32, 1536")
    e("v_lshlrev_b32 v8, 4, v0")
    e("v_add_u32 v8, s33, v8")
    e("v_lshrrev_b32 v16, 5, v0")
    e("v_mul_u32_u24 v16, 53760, v16")
    e("v_add_u32 v9, v8, v16")
    e("v_add_u32 v10, 53760, v8")
    e(f"v_add_u32 v11, {2*53760}, v8")
    e(f"v_add_u32 v12, {2*53760+4096}, v8")
    e(f"s_mul_i32 s34, s32, {KGS}"); e(f"s_add_u32 s34, s34, {WBASE}")
    e("s_lshl_b32 s33, s32, 6")
    e("v_add_u32 v16, s33, v0")
    e("v_mul_u32_u24 v17, 171, v16")
    e("v_lshrrev_b32 v17, 11, v17")
    e("v_mul_u32_u24 v18, 12, v17")
    e("v_sub_u32 v16, v16, v18")
    e("v_lshrrev_b32 v18, 1, v17")
    e("v_and_b32 v18, 2, v18")
    e("v_xor_b32 v16, v16, v18")
    e("v_add_u32 v17, s36, v17")
    e("v_subrev_u32 v17, 2, v17")
    e("v_add_u32 v18, 224, v17")
    e("v_min_u32 v17, v17, v18")
    e("v_mul_u32_u24 v17, 192, v17")
    e("v_lshl_add_u32 v13, v16, 4, v17")
    e("s_lshl_b32 s33, s32, 10")
    e("s_mul_i32 s18, s38, 43008"); e(f"s_add_u32 s25, s18, {7*43008}")
    if rot:
        e("s_lshr_b32 s39, s2, 3"); e("s_mul_i32 s3, s39, 21846"); e("s_lshr_b32 s3, s3, 16")
        e("s_mul_i32 s93, s3, 3"); e("s_sub_u32 s93, s39, s93")
        e("s_mul_i32 s94, s3, 21846"); e("s_lshr_b32 s94, s94, 16"); e("s_mul_i32 s94, s94, 3"); e("s_sub_u32 s94, s3, s94")
    else:
        e("s_mov_b32 s93, 0"); e("s_mov_b32 s94, 0")
    e("s_mul_i32 s76, s93, 18432"); e("s_mul_i32 s80, s94, 6144"); e(f"s_add_u32 s{sWo}, s76, s80")
    def late():
        for j in (1, 2):
            e(f"s_add_u32 s{76+j}, s{75+j}, 18432"); e(f"s_cmp_eq_u32 s{76+j}, 55296"); e(f"s_cselect_b32 s{76+j}, 0, s{76+j}")
            e(f"s_add_u32 s{80+j}, s{79+j}, 6144"); e(f"s_cmp_eq_u32 s{80+j}, 18432"); e(f"s_cselect_b32 s{80+j}, 0, s{80+j}")
        for g in range(1, 9): e(f"s_add_u32 s{sWo+g}, s{76+g//3}, s{80+g%3}")
        e("s_add_u32 s39, s38, 222"); e("s_sub_u32 s16, s38, 2"); e("s_cmp_eq_u32 s38, 0")
        e("s_cselect_b32 s16, s39, s16"); e("s_mul_i32 s16, s16, 43008"); e("s_add_u32 s17, s16, 43008")
        for i in range(3, 16):
            if i != 9: e(f"s_add_u32 s{16+i}, s18, {(i-2)*43008}")
    e("s_cmp_eq_u32 s32, 3"); e("s_cselect_b32 s98, 0xffffff, -1"); e("s_cselect_b32 s99, 0, -1")
    e("s_waitcnt lgkmcnt(0)")
    stamp('karg')
    e("s_mov_b32 s8, s6"); e("s_mov_b32 s9, s7"); e("s_mov_b32 s10, 165888"); e("s_mov_b32 s11, 0x20000")
    e("s_mov_b32 s6, 9633792"); e("s_mov_b32 s7, 0x20000")
    e("s_mov_b32 s14, 9633792"); e("s_mov_b32 s15, 0x20000")
    vm = [0]
    ds = [0]
    vmdone = {}
    dsdone = {}
    def dmaW(g):
        c, kw = groups[g]; slot = g % NSLOT
        so = kw*18432 + c*6144
        out = []
        sG = sWo + g
        out.append(([f"s_add_u32 m0, s{sM0W}, {slot*WSLOT}", "s_nop 0",
                     f"buffer_load_dwordx4 v8, s[8:11], s{sG} offen lds"], 'vm', None))
        for m in (1, 2, 3):
            out.append(([f"buffer_load_dwordx4 v{8+m}, s[8:11], s{sG} offen offset:{1024*m} lds"], 'vm', None))
        out.append(([f"s_add_u32 m0, s{sM0W}, {slot*WSLOT+4096}", "s_mov_b32 exec_hi, 0",
                     f"buffer_load_dwordx4 v12, s[8:11], s{sG} offen lds", "s_mov_b32 exec_hi, -1"], 'vm', ('W', g)))
        return out
    def dmaX(i):
        return [([f"s_add_u32 m0, s{sM0X}, {i*XP}", "s_mov_b64 exec, s[98:99]",
                  f"buffer_load_dwordx4 v13, s[4:7], s{sRow+i} offen lds", "s_mov_b64 exec, -1"], 'vm', ('X', i))]
    def wread(g):
        slot = g % NSLOT; out = []
        for kh in (2, 1, 0):
            for t in range(3):
                k, b = wreg(g*9 + kh*3 + t)
                for half in range(2):
                    off = slot*WSLOT + kh*1536 + half*768
                    va = vWA if t < 2 else vWS
                    if t == 1: off += 32
                    if slot >= 3: off -= 3*WSLOT; va += 2
                    out.append(([f"ds_read_b64_tr_b16 {rr(k, b+2*half, 2)}, v{va} offset:{off}"], 'ds', ('w', g, kh, t) if half else None))
        return out
    def put(item):
        lines, kind, tag = item
        for l in lines: e(l)
        if kind == 'vm':
            vm[0] += 1
            if tag: vmdone[tag] = vm[0]
        elif kind == 'ds':
            ds[0] += 1
            if tag: dsdone[tag] = ds[0]
    dswaited = [0]
    def waitds(tag):
        n = dsdone[tag]
        if n > dswaited[0]:
            e(f"s_waitcnt lgkmcnt({min(15, ds[0]-n)})"); dswaited[0] = max(n, ds[0]-15)
    plan = cfg['plan']
    first = True
    for tok in plan['init']:
        if tok[0] == 'W':
            for it in dmaW(tok[1]): put(it)
        elif tok[0] == 'X':
            for it in dmaX(tok[1]): put(it)
        elif tok[0] == 'stamp': stamp(tok[1])
        elif tok[0] == 'PF':
            e("s_lshr_b32 s39, s2, 3"); e("s_lshl_b32 s39, s39, 2"); e("s_add_u32 s39, s39, s32")
            e("s_mul_i32 s3, s39, 1821"); e("s_lshr_b32 s3, s3, 16"); e("s_mul_i32 s3, s3, 36"); e("s_sub_u32 s39, s39, s3")
            e("s_mul_i32 s39, s39, 4608")
            e("v_mul_u32_u24 v20, 72, v0"); e("v_and_b32 v20, 0xfffffffc, v20")
            put(([f"buffer_load_dword v21, v20, s[8:11], s39 offen"], 'vm', None))
        elif tok[0] == 'wait':
            e(f"s_waitcnt vmcnt({vm[0]-vmdone[tuple(tok[1])]})"); stamp(tok[2])
        elif tok[0] == 'addr':
            e("v_lshrrev_b32 v16, 4, v0")
            e("v_and_b32 v17, 15, v0")
            e("s_and_b32 s39, s32, 1")
            e("s_lshr_b32 s3, s32, 1")
            e(f"v_mul_u32_u24 v1, {KGS}, v16")
            e("v_bfe_u32 v18, v0, 2, 2"); e("v_mul_u32_u24 v18, 192, v18"); e("v_add_u32 v1, v1, v18")
            e("v_and_b32 v18, 3, v0"); e("v_lshl_add_u32 v1, v18, 3, v1")
            e(f"v_add_u32 v1, {WBASE}, v1")
            e("s_lshl_b32 s35, s39, 5"); e("s_add_u32 s35, s35, 64")
            e("v_add_u32 v2, s35, v1")
            e("s_lshl_b32 s39, s39, 7")
            e("v_add_u32 v1, s39, v1")
            e(f"v_add_u32 v3, {3*WSLOT}, v1"); e(f"v_add_u32 v4, {3*WSLOT}, v2")
            e("v_mul_u32_u24 v14, 192, v17")
            e("v_lshl_add_u32 v15, v16, 3, v14"); e("v_add_u32 v15, s35, v15")
            e("v_and_b32 v18, 1, v16"); e("v_lshl_add_u32 v14, v18, 5, v14")
            e("v_lshrrev_b32 v18, 1, v16"); e("v_lshl_add_u32 v14, v18, 4, v14"); e("v_add_u32 v14, s39, v14")
            e(f"s_mul_i32 s39, s3, {7*XP}")
            e("s_sub_u32 s93, 2, s93")
            for j in range(3):
                e("v_add_u32 v18, s93, v17")
                if j < 2: e("s_sub_u32 s93, s93, 1"); e("s_cselect_b32 s93, 2, s93")
                e("v_lshrrev_b32 v19, 1, v18"); e("v_and_b32 v19, 2, v19"); e("v_xor_b32 v19, v19, v16")
                e("v_mul_u32_u24 v18, 192, v18"); e(f"v_lshl_add_u32 v{vX[j]}, v19, 4, v18")
            for j in range(3):
                e(f"s_lshr_b32 s{80+j}, s{80+j}, 11"); e(f"s_mul_i32 s{80+j}, s{80+j}, 21"); e(f"s_add_u32 s{80+j}, s{80+j}, 63");
                e(f"s_and_b32 s{80+j}, s{80+j}, 0xc0"); e(f"s_add_u32 s{80+j}, s{80+j}, s39")
            for g in range(9): e(f"v_add_u32 v{vXg[g]}, s{80+g%3}, v{vX[g//3]}")
            e("s_mul_i32 s3, s3, 7"); e("s_add_u32 s3, s3, s38"); e("s_mul_i32 s3, s3, 224"); e("s_add_u32 s3, s3, s36")
            e("s_mul_i32 s35, s3, 192")
        elif tok[0] == 'TX':
            e("v_and_b32 v20, 15, v0"); e("v_add_u32 v20, s38, v20"); e("s_mul_i32 s3, s36, 192")
            if 'o' in tok[1]:
                e("v_mul_u32_u24 v22, 43008, v20")
                put(([f"buffer_load_dword v23, v22, s[12:15], s3 offen"], 'vm', None))
            if 'x' in tok[1]:
                e("v_subrev_u32 v20, 2, v20"); e("v_add_u32 v21, 224, v20"); e("v_min_u32 v20, v20, v21")
                e("v_mul_u32_u24 v20, 43008, v20")
                put(([f"buffer_load_dword v21, v20, s[4:7], s3 offen"], 'vm', None))
        elif tok[0] == 'hop':
            e("s_mov_b64 vcc, -1")
            e("s_cmp_eq_u32 s32, 3"); e("s_cbranch_scc1 L_pad0"); e("s_cmp_eq_u32 s32, 2"); e("s_cbranch_scc1 L_pad1")
            e("L_main:"); e("s_mov_b64 vcc, 0")
        elif tok[0] == 'late': late()
        elif tok[0] == 'addr2':
            for g in tok[1]:
                e(f"s_cmp_ge_u32 s{sWo+g}, 18432"); e("s_cselect_b64 vcc, -1, 0"); e(f"s_cselect_b32 s3, 18432, 0")
                e(f"v_cndmask_b32 v{vXg[g]}, v{vX[0]}, v{vX[1]}, vcc")
                e(f"s_cmp_ge_u32 s{sWo+g}, 36864"); e("s_cselect_b64 vcc, -1, 0"); e(f"s_cselect_b32 s3, 36864, s3")
                e(f"v_cndmask_b32 v{vXg[g]}, v{vXg[g]}, v{vX[2]}, vcc")
                e(f"s_sub_u32 s3, s{sWo+g}, s3"); e("s_lshr_b32 s3, s3, 12"); e("s_add_u32 s3, s3, 1"); e("s_lshr_b32 s3, s3, 1"); e("s_lshl_b32 s3, s3, 6")
                e(f"v_add_u32 v{vXg[g]}, s3, v{vXg[g]}")
    stamp('issued')
    paths = cfg.get('paths', 1)
    def main(w):
        seq = plan['seq']
        units = [t for t in seq if t[0] == 'u']
        assert sorted((t[1], t[2]) for t in units) == [(i, g) for i in range(9) for g in range(9)]
        remaining = {r: 81 for r in range(7)}
        started = set()
        side = []
        uidx = [0]
        fr_issued = [0]
        barpos = [0]; ubar = []; nb = 0
        for t in seq:
            if t[0] == 'bar': nb += 1
            if t[0] == 'u': ubar.append(nb)
        xavail = {}; nb = 0
        for t in seq:
            if t[0] == 'bar':
                nb += 1
                for tg in t[1]:
                    if tg[0] == 'X': xavail[tg[1]] = nb
        def xbar(i): return max(xavail[i], xavail[i+7])
        curbar = [0]
        PF = cfg.get('pf', 2)
        def frag_item(n):
            _, i, g = units[n]; c, kw = groups[g]
            return ([f"ds_read_b128 v[{vF+4*(n%NF)}:{vF+4*(n%NF)+3}], v{vXg[g]} offset:{i*XP}"], 'ds', ('f', n))
        def try_frags():
            out = []
            while fr_issued[0] < len(units) and fr_issued[0] <= uidx[0]+PF and xbar(units[fr_issued[0]][1]) <= curbar[0]:
                out.append(frag_item(fr_issued[0])); fr_issued[0] += 1
            return out
        pend_store = []
        nm = [0]
        tset = [0]
        def store_items(r):
            T = vT + 8*(tset[0] & 1); tset[0] += 1
            a = lambda t: acc(r, t)
            cv = lambda d, s: f"v_cvt_pk_bf16_f32 v{d}, v{s}, v{s+1}"
            nt = cfg.get('stflag', '')
            return [([cv(T, a(0)), cv(T+1, a(0)+2)], 'v', None), ([cv(T+2, a(1)), cv(T+3, a(1)+2)], 'v', None),
                    ([cv(T+4, a(2)), cv(T+5, a(2)+2)], 'v', None),
                    ([f"s_add_u32 s{sOrow}, s{sOut}, {r*43008}", f"v_permlane16_swap_b32 v{T}, v{T+2}"], 'v', None),
                    ([f"v_permlane16_swap_b32 v{T+1}, v{T+3}"], 'v', None),
                    ([f"buffer_store_dwordx2 v[{T+4}:{T+5}], v{vOS}, s[12:15], s{sOrow} offen {nt}"], 'vm', None),
                    ([f"buffer_store_dwordx4 v[{T}:{T+3}], v{vOB}, s[12:15], s{sOrow} offen {nt}"], 'vm', None)]
        dq = []; vq = []; sq = []
        def flush(q, pred):
            while q and pred(): put(q.pop(0))
        lastvm = [-99]; ph = w if paths > 1 else 0
        vmgap = [cfg.get('vmgap', 4)]; stag = [cfg.get('stag', 0)]; nm_bar = [0]; dsr = [cfg.get('dsrate', 2)]
        for t in seq:
            if t[0] == 'stamp': stamp(t[1])
            elif t[0] == 'gap': vmgap[0] = t[1]
            elif t[0] == 'stag': stag[0] = t[1]
            elif t[0] == 'dsr': dsr[0] = t[1]
            elif t[0] == 'vm':
                for _ in range(t[1]):
                    if vq: put(vq.pop(0))
                lastvm[0] = nm[0]
            elif t[0] == 'dsall': flush(dq, lambda: True)
            elif t[0] == 'bar':
                for g in t[2] if len(t) > 2 else []:
                    flush(dq, lambda: ('w', g, 0, 2) not in dsdone)
                    waitds(('w', g, 0, 2))
                for tg in t[1]: flush(vq, lambda: tuple(tg) not in vmdone)
                need = max(vmdone[tuple(tg)] for tg in t[1]) if t[1] else 0
                if need: e(f"s_waitcnt vmcnt({vm[0]-need})")
                e("s_barrier"); curbar[0] += 1; nm_bar[0] = nm[0]
                for it in try_frags(): put(it)
            elif t[0] == 'wread':
                dq.extend(wread(t[1]))
            elif t[0] == 'dma':
                vq.extend(dmaW(t[1][1]) if t[1][0] == 'W' else dmaX(t[1][1]))
            elif t[0] == 'u':
                n = uidx[0]; _, i, g = t
                assert fr_issued[0] > n, (t, "frag not issued")
                for kh in (2, 1, 0):
                    r = i - 2 + kh
                    if not (0 <= r <= 6): continue
                    for tt in range(3):
                        tag = ('w', g, kh, tt)
                        flush(dq, lambda: tag not in dsdone)
                        waitds(tag); waitds(('f', n))
                        k, b = wreg(g*9 + kh*3 + tt)
                        A = acc(r, tt)
                        cin = f"v[{A}:{A+3}]" if (r, tt) in started else "0"
                        started.add((r, tt))
                        e(f"v_mfma_f32_16x16x32_bf16 v[{A}:{A+3}], {rr(k, b, 4)}, v[{vF+4*(n%NF)}:{vF+4*(n%NF)+3}], {cin}")
                        nm[0] += 1
                        if pend_store and not sq and nm[0] - pend_store[0][1] >= 9:
                            sq.extend(store_items(pend_store.pop(0)[0]))
                        if vq and nm[0] - lastvm[0] >= vmgap[0] and (not stag[0] or (nm[0] - nm_bar[0]) % 4 == ph):
                            put(vq.pop(0)); lastvm[0] = nm[0]
                        elif dq:
                            for _ in range(dsr[0]):
                                if dq: put(dq.pop(0))
                        elif sq:
                            if sq[0][1] != 'vm' or (nm[0] - lastvm[0] >= cfg.get('stgap', 2) and (not stag[0] or nm[0] % 4 == ph)):
                                if sq[0][1] == 'vm': lastvm[0] = nm[0]
                                put(sq.pop(0))
                    remaining[r] -= 3
                    if remaining[r] == 0: pend_store.append((r, nm[0]))
                uidx[0] += 1
                for it in try_frags(): put(it)
        stamp('mfma_done')
        assert not vq and not dq
        if sq: e('s_nop 1')
        while sq: put(sq.pop(0))
        if pend_store: e("s_nop 7")
        for r, _ in pend_store:
            its = store_items(r)
            for j, it in enumerate(its):
                if j == 3: e("s_nop 1")
                put(it)

    snap = (vm[0], ds[0], dict(vmdone), dict(dsdone), dswaited[0], nst[0], list(stn))
    if paths > 1:
        for w in range(1, paths): e(f"s_cmp_eq_u32 s32, {w}"); e(f"s_cbranch_scc1 L_w{w}")
    for w in range(paths):
        vm[0], ds[0] = snap[0], snap[1]; vmdone.clear(); vmdone.update(snap[2]); dsdone.clear(); dsdone.update(snap[3])
        dswaited[0] = snap[4]; nst[0] = snap[5]; stn[:] = snap[6]
        if w: e(".p2align 6"); e(f"L_w{w}:")
        main(w)
        if w < paths-1: e("s_branch L_fin" if stamps else "s_endpgm")
    e("L_fin:")
    if stamps:
        stamp('stores_issued')
        e("s_waitcnt vmcnt(0)")
        stamp('end'); stamp('Rend')
        e("s_getreg_b32 s39, hwreg(HW_REG_XCC_ID)")
        e("s_waitcnt lgkmcnt(0)")
        e("s_mov_b32 s8, s96"); e("s_mov_b32 s9, s97"); e("s_mov_b32 s10, 0x100000")
        if stamps == 'dbg':
            e("s_cmp_lg_u32 s32, 0"); e("s_cbranch_scc1 L_end")
            e("s_mov_b32 s10, 256"); e("v_mov_b32 v1, 0"); e("s_mov_b64 exec, 1")
            e(f"s_not_b32 s3, s{sSt}"); e("v_mov_b32 v2, s3"); e("buffer_atomic_umax v2, v1, s[8:11], 0 offen")
            e(f"v_mov_b32 v3, s{sSt+2*(nst[0]-1)}"); e("buffer_atomic_umax v3, v1, s[8:11], 0 offen offset:4")
            e(f"v_mov_b32 v4, s{sSt}"); e("buffer_atomic_umax v4, v1, s[8:11], 0 offen offset:8")
            for j in range(2, nst[0]-1):
                if j+1 > 15: break
                e(f"s_sub_u32 s3, s{sSt+2*j}, s{sSt+2}"); e(f"v_mov_b32 v{5+j}, s3")
                e(f"buffer_atomic_add v{5+j}, v1, s[8:11], 0 offen offset:{4*(j+1)}")
            e("s_endpgm")
        e("s_lshl_b32 s3, s2, 2"); e("s_add_u32 s3, s3, s32"); e("s_lshl_b32 s3, s3, 8")
        e("v_mov_b32 v1, 0"); e("v_mov_b32 v2, s39")
        e("buffer_store_dword v2, v1, s[8:11], s3 offen offset:252")
        for j in range(nst[0]):
            e(f"v_mov_b32 v2, s{sSt+2*j}"); e(f"v_mov_b32 v3, s{sSt+2*j+1}")
            e(f"buffer_store_dwordx2 v[2:3], v1, s[8:11], s3 offen offset:{8*j}")
            e("s_nop 1")
    e("L_end:")
    e("s_endpgm")
    hdr = open('standalone__fft_conv__vision.s.ref').read().split('\n')
    out = []
    for l in hdr:
        if l.startswith('; @launch'): out.append(f"; @launch grid=(224,1,1) block=(256,1,1) lds={LDS}"); continue
        out.append(l)
        if l.startswith('standalone__fft_conv__vision_kernel:'): break
    if cfg.get('align12'): out = [l.replace('.p2align 8', '.p2align 12') for l in out]
    if any(t[0] == 'hop' for t in plan['init']):
        assert cfg.get('align12') and paths == 1
        import subprocess, re
        L = list(L)
        def addrs():
            open('_p.s', 'w').write('.amdgcn_target "amdgcn-amd-amdhsa--gfx950"\n.text\n' + '\n'.join(L) + '\n' + ''.join(f'L_pad{k}:\n' for k in range(8) if f'L_pad{k}:' not in L))
            subprocess.check_call('clang -x assembler -target amdgcn-amd-amdhsa -mcpu=gfx950 -c _p.s -o _p.o', shell=True)
            d = subprocess.check_output('llvm-objdump -d _p.o', shell=True).decode()
            return [int(m.group(1), 16) for m in re.finditer(r'// ([0-9A-F]{12}):', d)]
        k = 0; step = cfg.get('hopstep', 4096)
        while True:
            A = addrs(); idx = [i for i, l in enumerate(L) if not l.endswith(':')]; A = [a + 0x300 for a in A]
            assert len(A) == len(idx)
            nxt = [i for a, i in zip(A, idx) if a >= (k+1)*step]
            last = A[-1] < (k+2)*step + 64
            if not nxt: break
            L[nxt[0]:nxt[0]] = [f"L_pad{k}:", f"s_cbranch_vccnz L_main"]
            k += 1
            if last: break
        assert k == 2, k
    out += ["    "+l if not l.endswith(':') else l for l in L]
    out += """.section .rodata,"a"
.p2align 6
.amdhsa_kernel standalone__fft_conv__vision_kernel
  .amdhsa_next_free_vgpr 512
  .amdhsa_next_free_sgpr 102
  .amdhsa_accum_offset 256
  .amdhsa_group_segment_fixed_size 0
  .amdhsa_kernarg_size 40
  .amdhsa_user_sgpr_count 2
  .amdhsa_user_sgpr_kernarg_segment_ptr 1
  .amdhsa_system_sgpr_workgroup_id_x 1
.end_amdhsa_kernel""".split('\n')
    return '\n'.join(out)+'\n', stn

def plan_v1():
    init = [('W',0),('X',0),('X',7),('X',1),('X',8),('addr',),('X',2),('X',9),('X',3),('X',10),('W',1),('X',4),('X',11),('W',2),
            ('X',5),('X',12),('W',3),('X',6),('X',13),('W',4),('X',14),('X',15)]
    seq = []
    done = set()
    def U(lst):
        for i, g in lst:
            if (i, g) not in done: done.add((i, g)); seq.append(('u', i, g))
    seq += [('bar', [('W',0),('X',0),('X',7),('X',1),('X',8),('X',2),('X',9),('X',3),('X',10)]), ('stamp','b0'), ('wread',0)]
    U([(0,0),(1,0),(2,0)])
    seq += [('bar', [('W',1),('X',4),('X',11)], [0]), ('stamp','b1'), ('wread',1), ('dma',('W',5))]
    U([(3,0),(4,0),(0,1),(1,1),(2,1)])
    seq += [('bar', [('W',2),('X',5),('X',12)], [1]), ('stamp','b2'), ('wread',2), ('dma',('W',6))]
    U([(3,1),(4,1),(0,2),(1,2),(2,2)])
    seq += [('bar', [('W',3),('X',6),('X',13)], [2]), ('stamp','b3'), ('wread',3), ('dma',('W',7))]
    U([(3,2),(4,2),(0,3),(1,3),(2,3)])
    seq += [('bar', [('W',4),('X',14),('X',15)], [3]), ('stamp','b4'), ('wread',4), ('dma',('W',8))]
    U([(3,3),(4,3),(0,4),(1,4),(2,4)])
    for g in range(5, 9):
        seq += [('bar', [('W',g)]), ('stamp',f'b{g}'), ('wread',g)]
        U([(3,g-1),(4,g-1),(0,g),(1,g),(2,g)])
    U([(3,8),(4,8)])
    seq += [('stamp','phB')]
    for i in range(5, 9): U([(i, g) for g in range(9)])
    return {'init': init, 'seq': seq}

if __name__ == '__main__':
    cfg = {'plan': plan_v1()}
    for a in sys.argv[2:]:
        k, v = a.split('='); cfg[k] = json.loads(v) if v and v[0] in '0123456789[tf' else v
    if 'planf' in cfg:
        import plans; cfg['plan'] = getattr(plans, cfg['planf'])()
    s, stn = gen(cfg)
    open(sys.argv[1], 'w').write(s)
    print(stn)
```

```python
class P:
    def __init__(s): s.seq=[]; s.done=set()
    def U(s,lst):
        for i,g in lst:
            if (i,g) not in s.done: s.done.add((i,g)); s.seq.append(('u',i,g))
    def bar(s,tags,war=[],name=None):
        s.seq.append(('bar',tags,war))
        if name: s.seq.append(('stamp',name))
    def a(s,*t): s.seq += list(t)
W=lambda g:('W',g)
def XX(i): return [('X',i),('X',i+7)] if i not in (7,8) else [('X',i+7)]
def D(*toks): return [('dma',t) for t in toks]

def probe():
    r=v2()
    init=[W(0),('stamp','i0')]+XX(0)+XX(1)+[('addr',)]+XX(2)+XX(3)+XX(4)+XX(5)+[W(1),('stamp','i1'),
      ('wait',W(0),'aW0'),('wait',('X',9),'aX2'),('wait',('X',12),'aX5'),('wait',W(1),'aW1')]
    r['init']=init
    r['seq']=[t for t in r['seq'] if t[0]!='stamp' or t[1] in('b2','b4','b6','b8','phB')]
    return r

def v2():
    p=P()
    init=[W(0)]+XX(0)+XX(1)+[('addr',)]+XX(2)+XX(3)+XX(4)+XX(5)+[W(1)]
    p.bar([W(0)]+XX(0)+XX(1)+XX(2),name='b0'); p.a(('wread',0),*D(W(2)))
    p.U([(0,0),(1,0),(2,0)])
    p.bar(XX(3)+XX(4)+XX(5),name='b0x'); p.a(*D(W(3)))
    p.U([(3,0),(4,0),(5,0)])
    p.bar([W(1)],[0],name='b1'); p.a(('wread',1),*D(W(4),W(5)))
    p.U([(i,1) for i in range(6)])
    p.bar([W(2)],[1],name='b2'); p.a(('wread',2),*D(W(6)))
    p.U([(i,2) for i in range(5)])
    p.bar([W(3)],[2],name='b3'); p.a(('wread',3),*D(W(7)))
    p.U([(5,2)]+[(i,3) for i in range(4)])
    p.bar([W(4)],[3],name='b4'); p.a(('wread',4),*D(W(8),*XX(6),*XX(7),*XX(8)))
    p.U([(4,3)]+[(i,4) for i in range(4)])
    for g in range(5,9):
        p.bar([W(g)],name=f'b{g}'); p.a(('wread',g))
        p.U([(4,g-1)]+[(i,g) for i in range(4)])
    p.bar(XX(6)+XX(7)+XX(8))
    p.U([(4,8)])
    p.a(('stamp','phB'))
    for i in range(5,9): p.U([(i,g) for g in range(9)])
    return {'init':init,'seq':p.seq}
import gen
def v1few():
    r=gen.plan_v1()
    r['seq']=[t for t in r['seq'] if t[0]!='stamp' or t[1] in('b0','b2','b4','b6','b8','phB')]
    return r
def _probe(init):
    r=gen.plan_v1()
    r['init']=init
    r['seq']=[t for t in r['seq'] if t[0]!='stamp']
    return r
def wt(tok): return ('wait',tok,'a%s%d'%tok)
def probeA():
    xs=[2,3,1,0,4,5,6,7,8]
    init=[W(0),('addr',),W(1),W(2),W(3),W(4),('stamp','iW')]
    for i in xs: init+=XX(i)
    init+=[('stamp','iX')]+[wt(W(g)) for g in range(5)]+[wt(XX(i)[-1]) for i in xs]
    return _probe(init)
def probeB():
    xs=[2,3,1,0,4,5,6,7,8]
    init=[]
    for i in xs: init+=XX(i)
    init+=[('stamp','iX'),W(0),('addr',),W(1),W(2),W(3),W(4),('stamp','iW')]
    init+=[wt(XX(i)[-1]) for i in xs]+[wt(W(g)) for g in range(5)]
    return _probe(init)
def probeC():
    init=[W(0),*XX(2),('stamp','i0'),wt(W(0)),wt(('X',9)),W(1),*XX(3),('stamp','i1'),wt(W(1)),wt(('X',10)),
          W(2),('stamp','i2'),wt(W(2)),*XX(1),('stamp','i3'),wt(('X',8)),W(3),W(4),('stamp','i4'),wt(W(3)),wt(W(4)),('addr',)]
    for i in [0,4,5,6,7,8]: init+=XX(i)
    return _probe(init)
def v3(pf=True):
    p=P()
    init=([('PF',)] if pf else [])+[W(0)]+XX(2)+[W(1)]+XX(3)+[('addr',),W(2)]
    p.bar([W(0)]+XX(2),name='b0'); p.a(('wread',0),*D(*XX(1),W(3)))
    p.U([(2,0)])
    p.bar([W(1)],name='b1'); p.a(('wread',1))
    p.U([(2,1)])
    p.bar(XX(3)+[W(2)],[0],name='b2'); p.a(('wread',2),*D(*XX(0),W(4),W(5)))
    p.U([(3,0),(3,1),(2,2),(3,2)])
    p.bar(XX(1)+[W(3)],[1],name='b3'); p.a(('wread',3),*D(W(6)))
    p.U([(1,0),(1,1),(1,2),(2,3),(3,3)])
    p.bar(XX(0)+[W(4)],[2],name='b4'); p.a(('wread',4),*D(W(7)))
    p.U([(1,3),(0,0),(0,1),(0,2),(0,3),(2,4),(3,4)])
    p.bar([W(5)],[3],name='b5'); p.a(('wread',5),*D(W(8),*XX(4)))
    p.U([(1,4),(0,4),(2,5),(3,5)])
    p.bar([W(6)],name='b6'); p.a(('wread',6),*D(*XX(5)))
    p.U([(1,5),(0,5),(2,6),(3,6)])
    p.bar([W(7)],name='b7'); p.a(('wread',7),*D(*XX(6)))
    p.U([(1,6),(0,6),(2,7),(3,7)])
    p.bar([W(8)]+XX(4),name='b8'); p.a(('wread',8),*D(*XX(7),*XX(8)))
    p.U([(1,7),(0,7),(0,8),(1,8),(2,8),(3,8)])
    p.a(('stamp','phB'))
    p.U([(4,g) for g in range(7)])
    p.bar(XX(5)+XX(6)+XX(7)+XX(8),name='bx')
    for i in range(4,9): p.U([(i,g) for g in range(9)])
    return {'init':init,'seq':p.seq}
def v3n(): return v3(False)
def v4(pf=0):
    p=P()
    init=[W(0)]+XX(2)+([('PF',)] if pf else [])+[W(1)]+XX(3)+[('addr',),W(2)]+XX(1)
    p.bar([W(0)]+XX(2),name='b0'); p.a(('wread',0),('dsall',),*D(W(3),*XX(0),W(4)),('vm',2),('gap',3))
    p.U([(2,0)]); p.a(('vm',2))
    p.bar([W(1)]+XX(3),[0],name='b1'); p.a(('wread',1),*D(W(5)),('gap',4))
    p.U([(3,0),(2,1),(3,1)])
    p.bar([W(2)]+XX(1),[1],name='b2'); p.a(('wread',2),*D(W(6)))
    p.U([(1,0),(1,1),(2,2),(3,2),(1,2)])
    p.bar([W(3)]+XX(0),[2],name='b3'); p.a(('wread',3),*D(W(7)))
    p.U([(0,0),(0,1),(0,2),(2,3),(1,3),(0,3)])
    p.bar([W(4)],[3],name='b4'); p.a(('wread',4),*D(W(8),*XX(4),*XX(5),*XX(6),*XX(7),*XX(8)))
    p.U([(3,3),(2,4),(1,4),(0,4)])
    for g in range(5,9):
        p.bar([W(g)]+(XX(4) if g==8 else []),name=f'b{g}'); p.a(('wread',g))
        p.U([(3,g-1),(0,g),(1,g),(2,g)])
    p.U([(3,8)])
    p.a(('stamp','phB'))
    p.U([(4,g) for g in range(7)])
    p.bar(XX(5)+XX(6)+XX(7)+XX(8),name='bx')
    for i in range(4,9): p.U([(i,g) for g in range(9)])
    return {'init':init,'seq':p.seq}
def v4p(): return v4(1)
def addR(r,keep):
    q=[]
    for t in r['seq']:
        if t[0]=='stamp':
            if t[1] in keep: q+=[t,('stamp','R'+t[1])]
        else: q.append(t)
    r['seq']=q; return r
def v4r(): return addR(v4(),('b0','b2','b4','b6','b8','bx'))
def v5():
    p=P()
    init=[W(0)]+XX(2)+[W(1),('addr',)]+XX(3)+[('addr2',[0,1,2,3]),W(2),('addr2',[4,5,6,7,8])]+XX(1)
    p.bar([W(0)]+XX(2),name='b0'); p.a(('wread',0),('dsall',),*D(W(3),*XX(0),W(4)),('vm',2),('gap',2))
    p.U([(2,0)]); p.a(('vm',1))
    p.bar([W(1)]+XX(3),[0],name='b1'); p.a(('wread',1),*D(W(5)),('gap',3))
    p.U([(3,0),(2,1),(3,1)])
    p.bar([W(2)]+XX(1),[1],name='b2'); p.a(('wread',2),*D(W(6)))
    p.U([(1,0),(1,1),(2,2),(3,2),(1,2)])
    p.bar([W(3)]+XX(0),[2],name='b3'); p.a(('wread',3),*D(W(7)))
    p.U([(0,0),(0,1),(0,2),(2,3),(1,3),(0,3)])
    p.bar([W(4)],[3],name='b4'); p.a(('wread',4),*D(W(8),*XX(4)),('gap',4))
    p.U([(3,3),(2,4),(1,4),(0,4)])
    for g in range(5,9):
        p.bar([W(g)]+(XX(4) if g==8 else []),name=f'b{g}'); p.a(('wread',g))
        if g==6: p.a(*D(*XX(5),*XX(6),*XX(7),*XX(8)),('gap',6))
        p.U([(3,g-1),(0,g),(1,g),(2,g)])
    p.U([(3,8)])
    p.a(('stamp','phB'))
    p.U([(4,g) for g in range(7)])
    p.bar(XX(5)+XX(6)+XX(7)+XX(8),name='bx')
    for i in range(4,9): p.U([(i,g) for g in range(9)])
    return {'init':init,'seq':p.seq}
def v6():
    p=P()
    init=[W(0)]+XX(2)+[('stamp','i0'),('late',),W(1)]+XX(3)+[('stamp','i1'),('addr',)]
    p.bar([W(0)]+XX(2),name='b0'); p.a(('wread',0),('dsall',),*D(W(2),W(3),W(4)),('vm',3),('gap',2))
    p.U([(2,0)])
    p.bar([W(1)]+XX(3),[0],name='b1'); p.a(('wread',1),*D(*XX(1),W(5)),('gap',3))
    p.U([(3,0),(2,1)])
    p.bar([W(2)],[1],name='b2'); p.a(('wread',2),*D(*XX(0),W(6)))
    p.U([(3,1),(2,2)])
    p.bar([W(3)],[2],name='b3'); p.a(('wread',3),*D(W(7)))
    p.U([(3,2),(2,3)])
    p.bar([W(4)],[3],name='b4'); p.a(('wread',4),*D(W(8),*XX(4)))
    p.U([(3,3),(2,4)])
    p.bar(XX(1)+[W(5)],name='b5'); p.a(('wread',5))
    p.U([(3,4),(1,0),(2,5)])
    p.bar(XX(0)+[W(6)]); p.a(('wread',6))
    p.U([(3,5),(1,1),(2,6)])
    p.bar([W(7)]); p.a(('wread',7),*D(*XX(5),*XX(6),*XX(7),*XX(8)),('gap',6))
    p.U([(3,6),(1,2),(2,7)])
    p.bar([W(8)],name='b8'); p.a(('wread',8))
    p.U([(3,7),(1,3),(2,8)])
    p.U([(0,g) for g in range(9)]+[(1,g) for g in range(9)])
    p.bar(XX(4),name='phB')
    p.U([(3,8)]+[(4,g) for g in range(7)])
    p.bar(XX(5)+XX(6)+XX(7)+XX(8),name='bx')
    for i in range(4,9): p.U([(i,g) for g in range(9)])
    return {'init':init,'seq':p.seq}
def v6t():
    r=v6(); r['init']=XX(2)+[('TX','x'),W(0),('stamp','i0'),('late',),W(1)]+XX(3)+[('TX','o'),('stamp','i1'),('addr',)]
    return r
def keep(r,k):
    r['seq']=[t for t in r['seq'] if t[0]!='stamp' or t[1] in k]; return r
def v6few(): return keep(v6(),('b0','b1','b4','b5','b8','bx'))
def v7():
    p=P()
    init=XX(2)+[W(0),('late',)]+XX(3)+[W(1)]+XX(1)+[('addr',)]
    p.bar([W(0)]+XX(2),name='b0'); p.a(('wread',0),('dsall',),*D(W(2),*XX(0),W(3),W(4)),('vm',2),('gap',2),('stag',0))
    p.U([(2,0)])
    p.bar([W(1)]+XX(3),[0],name='b1'); p.a(('wread',1),*D(W(5)),('gap',4),('stag',1))
    p.U([(3,0),(2,1),(3,1)])
    p.bar([W(2)]+XX(1),[1],name='b2'); p.a(('wread',2),*D(W(6)))
    p.U([(1,0),(1,1),(2,2)])
    p.bar([W(3)]+XX(0),[2],name='b3'); p.a(('wread',3),*D(W(7)))
    p.U([(3,2),(1,2),(0,0),(0,1),(0,2)])
    p.bar([W(4)],[3],name='b4'); p.a(('wread',4),*D(W(8),*XX(4)))
    p.U([(2,3),(3,3),(1,3)])
    for g in range(5,9):
        p.bar([W(g)],name=f'b{g}'); p.a(('wread',g))
        if g==7: p.a(*D(*XX(5),*XX(6),*XX(7),*XX(8)),('gap',8))
        p.U([(0,g-2),(2,g-1),(3,g-1),(1,g-1)])
    p.bar(XX(4),name='phB')
    p.U([(0,7),(0,8),(1,8),(2,8),(3,8)]+[(4,g) for g in range(6)])
    p.bar(XX(5)+XX(6)+XX(7)+XX(8),name='bx')
    for i in range(4,9): p.U([(i,g) for g in range(9)])
    return {'init':init,'seq':p.seq}
def v7h():
    r=v7(); r['init']=r['init']+[('hop',)]; return r
def v6h():
    r=v6(); r['init']=r['init']+[('hop',)]; return r
def v7e():
    r=v7(); i=r['init']; r['init']=i[:-1]+[('hop',),i[-1]]; return r
def hop_at(r,n):
    i=r['init']; r['init']=i[:n]+[('hop',)]+i[n:]; return r
def v7f(): return hop_at(v7(),3)
def v7g(): return hop_at(v7(),7)
def v6f(): return hop_at(v6(),3)
def v6g(): return hop_at(v6(),8)
def v8(extra=1,gap=4):
    p=P()
    init=XX(2)+[W(0),('hop',),('late',)]+XX(3)+[W(1)]+XX(1)+[('addr',)]+([W(2)]+XX(0) if extra else [])
    p.bar([W(0)]+XX(2),name='b0'); p.a(('wread',0),('dsall',),*D(*([] if extra else [W(2)]+XX(0)),W(3),W(4)),('vm',2),('gap',2))
    p.U([(2,0)]); p.a(('vm',4))
    p.bar([W(1)]+XX(3),[0],name='b1'); p.a(('wread',1),*D(W(5)),('gap',gap),('dsr',2))
    p.U([(3,0),(2,1),(3,1)])
    p.bar([W(2),W(3)]+XX(1)+XX(0),[1],name='b2'); p.a(('wread',2),('wread',3),*D(W(6)))
    p.U([(1,0)]); p.a(('dsr',1)); p.U([(1,1),(0,0),(0,1),(2,2),(3,2),(1,2),(0,2)])
    p.bar([W(4),W(5)],[2,3],name='b3'); p.a(('wread',4),('wread',5),*D(W(7),W(8),*XX(4)))
    p.U([(i,g) for g in (3,4) for i in (2,3,1,0)])
    p.bar([W(6),W(7)],name='b4'); p.a(('wread',6),('wread',7),*D(*XX(5),*XX(6),*XX(7),*XX(8)),('gap',6))
    p.U([(i,g) for g in (5,6) for i in (2,3,1,0)])
    p.bar([W(8)]+XX(4),name='b5'); p.a(('wread',8))
    p.U([(2,7),(3,7),(1,7),(0,7),(0,8),(1,8),(2,8),(3,8)])
    p.a(('stamp','phB'))
    p.U([(4,g) for g in range(6)])
    p.bar(XX(5)+XX(6)+XX(7)+XX(8),name='bx')
    for i in range(4,9): p.U([(i,g) for g in range(9)])
    return {'init':init,'seq':p.seq}
def v8b(): return v8(0)
def v8c(): return v8(1,3)
def nohop(r): r['init']=[t for t in r['init'] if t[0]!='hop']; return r
def v8B():
    r=nohop(v8(0)); r['init'].append(('hop',)); return r
def v8C():
    r=nohop(v8(1)); i=r['init'].index(('addr',)); r['init'].insert(i+1,('hop',)); return r
def v8D():
    r=nohop(v8(1)); i=r['seq'].index(('vm',4)); r['seq'].insert(i+1,('hop',)); return r
def v8E():
    r=nohop(v8(1)); r['init'].insert(0,('hop',)); return r
def v8x():
    r=v8(); q=[];
    for t in r['seq']:
        q.append(t)
        if t[0]=='u' and t[2]==8 and t[1]>=4: q.append(('stamp','r%d'%t[1]))
    r['seq']=q
    r['init']=r['init'][:3]+[('stamp','i0')]+r['init'][3:4]+[('stamp','hop')]+r['init'][4:]
    return r
def v8t():
    r=v8(); r['init'].insert(3,('TP',4)); return r
def v8t0():
    r=v8(); r['init'].insert(0,('TP',4)); return r
def v8tx():
    r=v8(); r['init'].insert(3,('TX','x')); return r
def v8w():
    r=v8(); i=r['init']; r['init']=[i[2],i[0],i[1]]+i[3:]; return r
def v8r(): return addR(v8(),('b2','bx'))
def v9(nx=2,s6=1,x4=0):
    p=P()
    pre=XX(2)+XX(3)+(XX(1) if nx==3 else [])
    init=pre+[W(0),('hop',),('late',),W(1)]+(XX(1) if nx==2 else [])+[('addr',),W(2)]+XX(0)
    p.bar([W(0)]+pre,name='b0'); p.a(('wread',0),('dsall',),*D(W(3),W(4),*([W(5)] if s6 else [])),('vm',2),('gap',2))
    p.U([(2,0),(3,0)]+([(1,0)] if nx==3 else []))
    p.bar([W(1)]+(XX(1) if nx==2 else []),[0],name='b1'); p.a(('wread',1),*D(W(6) if s6 else W(5)),('gap',4),('dsr',2))
    p.U([(1,0),(2,1),(3,1),(1,1)] if nx==2 else [(2,1),(3,1),(1,1)])
    p.bar([W(2),W(3)]+XX(0),[1],name='b2'); p.a(('wread',2),('wread',3),*D(W(7) if s6 else W(6)))
    p.U([(0,0),(0,1)]); p.a(('dsr',1)); p.U([(2,2),(3,2),(1,2),(0,2),(2,3)])
    p.bar([W(4),W(5)],[2,3],name='b3'); p.a(('wread',4),('wread',5),*D(*([] if s6 else [W(7)]),W(8),*XX(4),*XX(5)))
    p.U([(3,3),(1,3),(0,3)]+[(i,4) for i in (2,3,1,0)]+[(2,5)])
    p.bar([W(6),W(7)],[5],name='b4'); p.a(('wread',6),('wread',7),*D(*XX(6),*XX(7),*XX(8)),('gap',6))
    p.U([(3,5),(1,5),(0,5)]+[(i,6) for i in (2,3,1,0)]+[(2,7)])
    p.bar([W(8)]+XX(4),name='b5'); p.a(('wread',8))
    p.U([(3,7),(1,7),(0,7),(0,8),(1,8),(2,8),(3,8)])
    p.a(('stamp','phB'))
    p.U([(4,g) for g in range(6)])
    p.bar(XX(5)+XX(6)+XX(7)+XX(8),name='bx')
    for i in range(4,9): p.U([(i,g) for g in range(9)])
    return {'init':init,'seq':p.seq}
def v9a(): return v9(2,0)
def v9b(): return v9(3,1)
def probeD():
    r=v8(); r['seq']=[t for t in r['seq'] if t[0]!='stamp']
    X=lambda i:('X',i)
    init=[('late',),('stamp','l')]
    for t in [X(2),X(9),X(3),W(0),W(1),X(10),W(2),X(1),X(8),X(0),X(7)]: init+=[t,wt(t)]
    r['init']=init+[('addr',),('hop',)]
    return r
def lean(k):
    r=v8(); full=[('X',3),('X',10),W(1),('X',1),('X',8),W(2),('X',0),('X',7)]
    order={0:[],1:[W(1)],2:[W(1),('X',3),('X',10)],3:[W(1),('X',3),('X',10),W(2)]}[k]
    rest=[t for t in full if t not in order]
    r['init']=XX(2)+[W(0),('hop',),('late',)]+order+[('addr',)]
    q=[]
    for t in r['seq']:
        if t==('dsall',): q+=[t]+D(*rest)+[('vm',sum(5 if x[0]=='W' else 1 for x in rest))]
        elif t[0]!='stamp' or t[1] in('b0','b1','b2','b3'): q.append(t)
    r['seq']=q; return r
def lean0(): return lean(0)
def lean1(): return lean(1)
def lean2(): return lean(2)
def lean3(): return lean(3)
```

```python
import sys, json
XP = 3456
XROWS = 16
WBASE = XROWS*XP
KGS = 4640
WSLOT = 4*KGS
NSLOT = 5
LDS = WBASE + NSLOT*WSLOT

def gen(cfg):
    global WBASE, LDS
    s6 = cfg.get('slots6')
    if s6: WBASE = 14*XP; LDS = WBASE + 6*WSLOT
    def slot_of(g): return ((g+1) % 6 if g < 6 else g-5) if s6 else g % NSLOT
    stamps = cfg.get('stamps', False)
    L = []
    e = L.append
    vWA, vWS, vWA2, vWS2 = 1, 2, 3, 4
    vX = [5, 6, 7]
    vDW = [8, 9, 10, 11, 12]
    vDX = 13
    vOB, vOS = 14, 15
    vT = 16
    vF = 32
    NF = 4
    vAcc = 48
    vW0 = 132
    def wreg(idx):
        return ('a', 4*idx) if idx < 64 else ('v', vW0+4*(idx-64))
    def rr(kind, b, n): return f"{kind}[{b}:{b+n-1}]"
    def acc(r, t): return vAcc + 12*r + 4*t
    sX, sWt, sO = 4, 8, 12
    sRow = 16
    sWave = 32; sM0X = 33; sM0W = 34; sOut = 35; sTmp = 36; sG = 37; sOrow = 38
    sSt = 40
    nst = [0]; stn = []
    def stamp(name):
        if stamps:
            op = "s_memrealtime" if name.startswith('R') else "s_memtime"
            e(f"{op} s[{sSt+2*nst[0]}:{sSt+2*nst[0]+1}]"); nst[0] += 1; stn.append(name)
    rot = cfg.get('rot', 0)
    groups = [(q % 3, q // 3) for q in range(9)]
    vXg = [200+g for g in range(9)]; sWo = 84
    stamp('Rstart'); stamp('start')
    e("s_load_dwordx4 s[4:7], s[0:1], 0")
    e("s_load_dwordx2 s[12:13], s[0:1], 16")
    if stamps: e(f"s_load_dwordx2 s[96:97], s[0:1], {24 if stamps=='dbg' else 32}")
    e("s_cmp_ge_u32 s2, 224")
    e("s_cbranch_scc1 L_end")
    e("v_lshrrev_b32 v16, 6, v0")
    e("v_and_b32 v0, 63, v0")
    e("v_readfirstlane_b32 s32, v16")
    e("s_and_b32 s36, s2, 7"); e("s_mul_i32 s36, s36, 28"); e("s_lshr_b32 s37, s2, 3"); e("s_add_u32 s36, s36, s37")
    e("s_mul_i32 s37, s36, 4682"); e("s_lshr_b32 s37, s37, 16")
    e("s_mul_i32 s38, s37, 14"); e("s_sub_u32 s36, s36, s38")
    e("s_lshl_b32 s36, s36, 4")
    e("s_mul_i32 s33, s32, 1536")
    e("v_lshlrev_b32 v8, 4, v0")
    e("v_add_u32 v8, s33, v8")
    e("v_lshrrev_b32 v16, 5, v0")
    e("v_mul_u32_u24 v16, 53760, v16")
    e("v_add_u32 v9, v8, v16")
    e("v_add_u32 v10, 53760, v8")
    e(f"v_add_u32 v11, {2*53760}, v8")
    e(f"v_add_u32 v12, {2*53760+4096}, v8")
    e(f"s_mul_i32 s34, s32, {KGS}"); e(f"s_add_u32 s34, s34, {WBASE}")
    e("s_lshl_b32 s33, s32, 6")
    e("v_add_u32 v16, s33, v0")
    e("v_mul_u32_u24 v17, 171, v16")
    e("v_lshrrev_b32 v17, 11, v17")
    e("v_mul_u32_u24 v18, 12, v17")
    e("v_sub_u32 v16, v16, v18")
    e("v_lshrrev_b32 v18, 1, v17")
    e("v_and_b32 v18, 2, v18")
    e("v_xor_b32 v16, v16, v18")
    e("v_add_u32 v17, s36, v17")
    e("v_subrev_u32 v17, 2, v17")
    e("v_add_u32 v18, 224, v17")
    e("v_min_u32 v17, v17, v18")
    e("v_mul_u32_u24 v17, 192, v17")
    e("v_lshl_add_u32 v13, v16, 4, v17")
    e("s_lshl_b32 s33, s32, 10")
    e("s_mul_i32 s18, s38, 43008"); e(f"s_add_u32 s25, s18, {7*43008}")
    if rot:
        e("s_lshr_b32 s39, s2, 3"); e("s_mul_i32 s3, s39, 21846"); e("s_lshr_b32 s3, s3, 16")
        e("s_mul_i32 s93, s3, 3"); e("s_sub_u32 s93, s39, s93")
        e("s_mul_i32 s94, s3, 21846"); e("s_lshr_b32 s94, s94, 16"); e("s_mul_i32 s94, s94, 3"); e("s_sub_u32 s94, s3, s94")
    else:
        e("s_mov_b32 s93, 0"); e("s_mov_b32 s94, 0")
    e("s_mul_i32 s76, s93, 18432"); e("s_mul_i32 s80, s94, 6144"); e(f"s_add_u32 s{sWo}, s76, s80")
    def late():
        for j in (1, 2):
            e(f"s_add_u32 s{76+j}, s{75+j}, 18432"); e(f"s_cmp_eq_u32 s{76+j}, 55296"); e(f"s_cselect_b32 s{76+j}, 0, s{76+j}")
            e(f"s_add_u32 s{80+j}, s{79+j}, 6144"); e(f"s_cmp_eq_u32 s{80+j}, 18432"); e(f"s_cselect_b32 s{80+j}, 0, s{80+j}")
        for g in range(1, 9): e(f"s_add_u32 s{sWo+g}, s{76+g//3}, s{80+g%3}")
        e("s_add_u32 s39, s38, 222"); e("s_sub_u32 s16, s38, 2"); e("s_cmp_eq_u32 s38, 0")
        e("s_cselect_b32 s16, s39, s16"); e("s_mul_i32 s16, s16, 43008"); e("s_add_u32 s17, s16, 43008")
        for i in range(3, 16):
            if i != 9: e(f"s_add_u32 s{16+i}, s18, {(i-2)*43008}")
    e("s_cmp_eq_u32 s32, 3"); e("s_cselect_b32 s98, 0xffffff, -1"); e("s_cselect_b32 s99, 0, -1")
    e("s_waitcnt lgkmcnt(0)")
    stamp('karg')
    e("s_mov_b32 s8, s6"); e("s_mov_b32 s9, s7"); e("s_mov_b32 s10, 165888"); e("s_mov_b32 s11, 0x20000")
    e("s_mov_b32 s6, 9633792"); e("s_mov_b32 s7, 0x20000")
    e("s_mov_b32 s14, 9633792"); e("s_mov_b32 s15, 0x20000")
    vm = [0]
    ds = [0]
    vmdone = {}
    dsdone = {}
    def dmaW(g):
        c, kw = groups[g]; slot = slot_of(g)
        so = kw*18432 + c*6144
        out = []
        sG = sWo + g
        out.append(([f"s_add_u32 m0, s{sM0W}, {slot*WSLOT}", "s_nop 0",
                     f"buffer_load_dwordx4 v8, s[8:11], s{sG} offen lds"], 'vm', None))
        for m in (1, 2, 3):
            out.append(([f"buffer_load_dwordx4 v{8+m}, s[8:11], s{sG} offen offset:{1024*m} lds"], 'vm', None))
        out.append(([f"s_add_u32 m0, s{sM0W}, {slot*WSLOT+4096}", "s_mov_b32 exec_hi, 0",
                     f"buffer_load_dwordx4 v12, s[8:11], s{sG} offen lds", "s_mov_b32 exec_hi, -1"], 'vm', ('W', g)))
        return out
    def dmaX(i):
        return [([f"s_add_u32 m0, s{sM0X}, {i*XP}", "s_mov_b64 exec, s[98:99]",
                  f"buffer_load_dwordx4 v13, s[4:7], s{sRow+i} offen lds", "s_mov_b64 exec, -1"], 'vm', ('X', i))]
    def wread(g):
        slot = slot_of(g); out = []
        for kh in (2, 1, 0):
            for t in range(3):
                k, b = wreg(g*9 + kh*3 + t)
                for half in range(2):
                    off = slot*WSLOT + kh*1536 + half*768
                    va = vWA if t < 2 else vWS
                    if t == 1: off += 32
                    if slot >= 3: off -= 3*WSLOT; va += 2
                    out.append(([f"ds_read_b64_tr_b16 {rr(k, b+2*half, 2)}, v{va} offset:{off}"], 'ds', ('w', g, kh, t) if half else None))
        return out
    def put(item):
        lines, kind, tag = item
        for l in lines: e(l)
        if kind == 'vm':
            vm[0] += 1
            if tag: vmdone[tag] = vm[0]
        elif kind == 'ds':
            ds[0] += 1
            if tag: dsdone[tag] = ds[0]
    dswaited = [0]
    def waitds(tag):
        n = dsdone[tag]
        if n > dswaited[0]:
            e(f"s_waitcnt lgkmcnt({min(15, ds[0]-n)})"); dswaited[0] = max(n, ds[0]-15)
    hopinit = [False]
    def hop():
        e("s_mov_b64 vcc, -1")
        if not hopinit[0]: e("v_mov_b32 v14, 0"); e("v_mov_b32 v15, 0")
        e("s_cmp_eq_u32 s32, 3"); e("s_cbranch_scc1 L_pad0"); e("s_cmp_eq_u32 s32, 2"); e("s_cbranch_scc1 L_pad1")
        e("L_main:"); e("s_mov_b64 vcc, 0")
    plan = cfg['plan']
    first = True
    for tok in plan['init']:
        if tok[0] == 'W':
            for it in dmaW(tok[1]): put(it)
        elif tok[0] == 'X':
            for it in dmaX(tok[1]): put(it)
        elif tok[0] == 'stamp': stamp(tok[1])
        elif tok[0] == 'PF':
            e("s_lshr_b32 s39, s2, 3"); e("s_lshl_b32 s39, s39, 2"); e("s_add_u32 s39, s39, s32")
            e("s_mul_i32 s3, s39, 1821"); e("s_lshr_b32 s3, s3, 16"); e("s_mul_i32 s3, s3, 36"); e("s_sub_u32 s39, s39, s3")
            e("s_mul_i32 s39, s39, 4608")
            e("v_mul_u32_u24 v20, 72, v0"); e("v_and_b32 v20, 0xfffffffc, v20")
            put(([f"buffer_load_dword v21, v20, s[8:11], s39 offen"], 'vm', None))
        elif tok[0] == 'wait':
            e(f"s_waitcnt vmcnt({vm[0]-vmdone[tuple(tok[1])]})"); stamp(tok[2])
        elif tok[0] == 'addr':
            hopinit[0] = True
            e("v_lshrrev_b32 v16, 4, v0")
            e("v_and_b32 v17, 15, v0")
            e("s_and_b32 s39, s32, 1")
            e("s_lshr_b32 s3, s32, 1")
            e(f"v_mul_u32_u24 v1, {KGS}, v16")
            e("v_bfe_u32 v18, v0, 2, 2"); e("v_mul_u32_u24 v18, 192, v18"); e("v_add_u32 v1, v1, v18")
            e("v_and_b32 v18, 3, v0"); e("v_lshl_add_u32 v1, v18, 3, v1")
            e(f"v_add_u32 v1, {WBASE}, v1")
            e("s_lshl_b32 s35, s39, 5"); e("s_add_u32 s35, s35, 64")
            e("v_add_u32 v2, s35, v1")
            e("s_lshl_b32 s39, s39, 7")
            e("v_add_u32 v1, s39, v1")
            e(f"v_add_u32 v3, {3*WSLOT}, v1"); e(f"v_add_u32 v4, {3*WSLOT}, v2")
            e("v_mul_u32_u24 v14, 192, v17")
            e("v_lshl_add_u32 v15, v16, 3, v14"); e("v_add_u32 v15, s35, v15")
            e("v_and_b32 v18, 1, v16"); e("v_lshl_add_u32 v14, v18, 5, v14")
            e("v_lshrrev_b32 v18, 1, v16"); e("v_lshl_add_u32 v14, v18, 4, v14"); e("v_add_u32 v14, s39, v14")
            e(f"s_mul_i32 s39, s3, {7*XP}")
            e("s_sub_u32 s93, 2, s93")
            for j in range(3):
                e("v_add_u32 v18, s93, v17")
                if j < 2: e("s_sub_u32 s93, s93, 1"); e("s_cselect_b32 s93, 2, s93")
                e("v_lshrrev_b32 v19, 1, v18"); e("v_and_b32 v19, 2, v19"); e("v_xor_b32 v19, v19, v16")
                e("v_mul_u32_u24 v18, 192, v18"); e(f"v_lshl_add_u32 v{vX[j]}, v19, 4, v18")
            for j in range(3):
                e(f"s_lshr_b32 s{80+j}, s{80+j}, 11"); e(f"s_mul_i32 s{80+j}, s{80+j}, 21"); e(f"s_add_u32 s{80+j}, s{80+j}, 63");
                e(f"s_and_b32 s{80+j}, s{80+j}, 0xc0"); e(f"s_add_u32 s{80+j}, s{80+j}, s39")
            for g in range(9): e(f"v_add_u32 v{vXg[g]}, s{80+g%3}, v{vX[g//3]}")
            e("s_mul_i32 s3, s3, 7"); e("s_add_u32 s3, s3, s38"); e("s_mul_i32 s3, s3, 224"); e("s_add_u32 s3, s3, s36")
            e("s_mul_i32 s35, s3, 192")
        elif tok[0] == 'TX':
            e("v_and_b32 v20, 15, v0"); e("v_add_u32 v20, s38, v20"); e("s_mul_i32 s3, s36, 192")
            if 'o' in tok[1]:
                e("v_mul_u32_u24 v22, 43008, v20")
                put(([f"buffer_load_dword v23, v22, s[12:15], s3 offen"], 'vm', None))
            if 'x' in tok[1]:
                e("v_subrev_u32 v20, 2, v20"); e("v_add_u32 v21, 224, v20"); e("v_min_u32 v20, v20, v21")
                e("v_mul_u32_u24 v20, 43008, v20")
                put(([f"buffer_load_dword v21, v20, s[4:7], s3 offen"], 'vm', None))
        elif tok[0] == 'hop':
            hop()
        elif tok[0] == 'TP':
            e("s_lshr_b32 s39, s2, 3"); e("s_lshl_b32 s39, s39, 2"); e("s_add_u32 s39, s39, s32")
            e("s_mul_i32 s3, s39, 2185"); e("s_lshr_b32 s3, s3, 16"); e("s_mul_i32 s3, s3, 30"); e("s_sub_u32 s39, s39, s3")
            e("s_and_b32 s3, s2, 7"); e("s_mul_i32 s3, s3, 28"); e("s_add_u32 s39, s39, s3"); e("s_add_u32 s3, s39, 222"); e("s_sub_u32 s39, s39, 2")
            e("s_cselect_b32 s39, s3, s39"); e("s_mul_i32 s39, s39, 43008"); e("s_mov_b64 exec, 1")
            put(([f"buffer_load_dword v21, v13, s[{tok[1]}:{tok[1]+3}], s39 offen"], 'vm', None)); e("s_mov_b64 exec, -1")
        elif tok[0] == 'late': late()
        elif tok[0] == 'addr2':
            for g in tok[1]:
                e(f"s_cmp_ge_u32 s{sWo+g}, 18432"); e("s_cselect_b64 vcc, -1, 0"); e(f"s_cselect_b32 s3, 18432, 0")
                e(f"v_cndmask_b32 v{vXg[g]}, v{vX[0]}, v{vX[1]}, vcc")
                e(f"s_cmp_ge_u32 s{sWo+g}, 36864"); e("s_cselect_b64 vcc, -1, 0"); e(f"s_cselect_b32 s3, 36864, s3")
                e(f"v_cndmask_b32 v{vXg[g]}, v{vXg[g]}, v{vX[2]}, vcc")
                e(f"s_sub_u32 s3, s{sWo+g}, s3"); e("s_lshr_b32 s3, s3, 12"); e("s_add_u32 s3, s3, 1"); e("s_lshr_b32 s3, s3, 1"); e("s_lshl_b32 s3, s3, 6")
                e(f"v_add_u32 v{vXg[g]}, s3, v{vXg[g]}")
    stamp('issued')
    paths = cfg.get('paths', 1)
    def main(w):
        seq = plan['seq']
        units = [t for t in seq if t[0] == 'u']
        assert sorted((t[1], t[2]) for t in units) == [(i, g) for i in range(9) for g in range(9)]
        remaining = {r: 81 for r in range(7)}
        started = set()
        side = []
        uidx = [0]
        fr_issued = [0]
        barpos = [0]; ubar = []; nb = 0
        for t in seq:
            if t[0] == 'bar': nb += 1
            if t[0] == 'u': ubar.append(nb)
        xavail = {}; nb = 0
        for t in seq:
            if t[0] == 'bar':
                nb += 1
                for tg in t[1]:
                    if tg[0] == 'X': xavail[tg[1]] = nb
        def xbar(i): return max(xavail[i], xavail[i+7])
        curbar = [0]
        PF = cfg.get('pf', 2)
        def frag_item(n):
            _, i, g = units[n]; c, kw = groups[g]
            return ([f"ds_read_b128 v[{vF+4*(n%NF)}:{vF+4*(n%NF)+3}], v{vXg[g]} offset:{i*XP}"], 'ds', ('f', n))
        def try_frags():
            out = []
            while fr_issued[0] < len(units) and fr_issued[0] <= uidx[0]+PF and xbar(units[fr_issued[0]][1]) <= curbar[0]:
                out.append(frag_item(fr_issued[0])); fr_issued[0] += 1
            return out
        pend_store = []
        nm = [0]
        tset = [0]
        def store_items(r):
            T = vT + 8*(tset[0] & 1); tset[0] += 1
            a = lambda t: acc(r, t)
            cv = lambda d, s: f"v_cvt_pk_bf16_f32 v{d}, v{s}, v{s+1}"
            nt = cfg.get('stflag', '')
            return [([cv(T, a(0)), cv(T+1, a(0)+2)], 'v', None), ([cv(T+2, a(1)), cv(T+3, a(1)+2)], 'v', None),
                    ([cv(T+4, a(2)), cv(T+5, a(2)+2)], 'v', None),
                    ([f"s_add_u32 s{sOrow}, s{sOut}, {r*43008}", f"v_permlane16_swap_b32 v{T}, v{T+2}"], 'v', None),
                    ([f"v_permlane16_swap_b32 v{T+1}, v{T+3}"], 'v', None),
                    ([f"buffer_store_dwordx2 v[{T+4}:{T+5}], v{vOS}, s[12:15], s{sOrow} offen {nt}"], 'vm', None),
                    ([f"buffer_store_dwordx4 v[{T}:{T+3}], v{vOB}, s[12:15], s{sOrow} offen {nt}"], 'vm', None)]
        dq = []; vq = []; sq = []
        def flush(q, pred):
            while q and pred(): put(q.pop(0))
        lastvm = [-99]; ph = w if paths > 1 else 0
        vmgap = [cfg.get('vmgap', 4)]; stag = [cfg.get('stag', 0)]; nm_bar = [0]; dsr = [cfg.get('dsrate', 2)]
        for t in seq:
            if t[0] == 'stamp': stamp(t[1])
            elif t[0] == 'gap': vmgap[0] = t[1]
            elif t[0] == 'stag': stag[0] = t[1]
            elif t[0] == 'hop': hop()
            elif t[0] == 'dsr': dsr[0] = t[1]
            elif t[0] == 'vm':
                for _ in range(t[1]):
                    if vq: put(vq.pop(0))
                lastvm[0] = nm[0]
            elif t[0] == 'dsall': flush(dq, lambda: True)
            elif t[0] == 'bar':
                for g in t[2] if len(t) > 2 else []:
                    flush(dq, lambda: ('w', g, 0, 2) not in dsdone)
                    waitds(('w', g, 0, 2))
                for tg in t[1]: flush(vq, lambda: tuple(tg) not in vmdone)
                need = max(vmdone[tuple(tg)] for tg in t[1]) if t[1] else 0
                if need: e(f"s_waitcnt vmcnt({vm[0]-need})")
                e("s_barrier"); curbar[0] += 1; nm_bar[0] = nm[0]
                for it in try_frags(): put(it)
            elif t[0] == 'wread':
                dq.extend(wread(t[1]))
            elif t[0] == 'dma':
                vq.extend(dmaW(t[1][1]) if t[1][0] == 'W' else dmaX(t[1][1]))
            elif t[0] == 'u':
                n = uidx[0]; _, i, g = t
                assert fr_issued[0] > n, (t, "frag not issued")
                for kh in (2, 1, 0):
                    r = i - 2 + kh
                    if not (0 <= r <= 6): continue
                    for tt in range(3):
                        tag = ('w', g, kh, tt)
                        flush(dq, lambda: tag not in dsdone)
                        waitds(tag); waitds(('f', n))
                        k, b = wreg(g*9 + kh*3 + tt)
                        A = acc(r, tt)
                        cin = f"v[{A}:{A+3}]" if (r, tt) in started else "0"
                        started.add((r, tt))
                        fo = f"v[{vF+4*(n%NF)}:{vF+4*(n%NF)+3}]"
                        e(f"v_mfma_f32_16x16x32_bf16 v[{A}:{A+3}], " + (f"{fo}, {rr(k, b, 4)}" if cfg.get('swap') else f"{rr(k, b, 4)}, {fo}") + f", {cin}")
                        nm[0] += 1
                        if pend_store and not sq and nm[0] - pend_store[0][1] >= 9:
                            sq.extend(store_items(pend_store.pop(0)[0]))
                        if vq and nm[0] - lastvm[0] >= vmgap[0] and (not stag[0] or (nm[0] - nm_bar[0]) % 4 == ph):
                            put(vq.pop(0)); lastvm[0] = nm[0]
                        elif dq:
                            for _ in range(dsr[0]):
                                if dq: put(dq.pop(0))
                        elif sq:
                            if sq[0][1] != 'vm' or (nm[0] - lastvm[0] >= cfg.get('stgap', 2) and (not stag[0] or nm[0] % 4 == ph)):
                                if sq[0][1] == 'vm': lastvm[0] = nm[0]
                                put(sq.pop(0))
                    remaining[r] -= 3
                    if remaining[r] == 0: pend_store.append((r, nm[0]))
                uidx[0] += 1
                for it in try_frags(): put(it)
        stamp('mfma_done')
        assert not vq and not dq
        if sq: e('s_nop 1')
        while sq: put(sq.pop(0))
        if pend_store: e("s_nop 7")
        for r, _ in pend_store:
            its = store_items(r)
            for j, it in enumerate(its):
                if j == 3: e("s_nop 1")
                put(it)

    snap = (vm[0], ds[0], dict(vmdone), dict(dsdone), dswaited[0], nst[0], list(stn))
    if paths > 1:
        for w in range(1, paths): e(f"s_cmp_eq_u32 s32, {w}"); e(f"s_cbranch_scc1 L_w{w}")
    for w in range(paths):
        vm[0], ds[0] = snap[0], snap[1]; vmdone.clear(); vmdone.update(snap[2]); dsdone.clear(); dsdone.update(snap[3])
        dswaited[0] = snap[4]; nst[0] = snap[5]; stn[:] = snap[6]
        if w: e(".p2align 6"); e(f"L_w{w}:")
        main(w)
        if w < paths-1: e("s_branch L_fin" if stamps else "s_endpgm")
    e("L_fin:")
    if stamps:
        stamp('stores_issued')
        e("s_waitcnt vmcnt(0)")
        stamp('end'); stamp('Rend')
        e("s_getreg_b32 s39, hwreg(HW_REG_XCC_ID)")
        e("s_waitcnt lgkmcnt(0)")
        e("s_mov_b32 s8, s96"); e("s_mov_b32 s9, s97"); e("s_mov_b32 s10, 0x100000")
        if stamps == 'dbg':
            e("s_cmp_lg_u32 s32, 0"); e("s_cbranch_scc1 L_end")
            e("s_mov_b32 s10, 256"); e("v_mov_b32 v1, 0"); e("s_mov_b64 exec, 1")
            e(f"s_not_b32 s3, s{sSt}"); e("v_mov_b32 v2, s3"); e("buffer_atomic_umax v2, v1, s[8:11], 0 offen")
            e(f"v_mov_b32 v3, s{sSt+2*(nst[0]-1)}"); e("buffer_atomic_umax v3, v1, s[8:11], 0 offen offset:4")
            e(f"v_mov_b32 v4, s{sSt}"); e("buffer_atomic_umax v4, v1, s[8:11], 0 offen offset:8")
            for j in range(2, nst[0]-1):
                if j+1 > 15: break
                e(f"s_sub_u32 s3, s{sSt+2*j}, s{sSt+2}"); e(f"v_mov_b32 v{5+j}, s3")
                e(f"buffer_atomic_add v{5+j}, v1, s[8:11], 0 offen offset:{4*(j+1)}")
            e("s_endpgm")
        e("s_lshl_b32 s3, s2, 2"); e("s_add_u32 s3, s3, s32"); e("s_lshl_b32 s3, s3, 8")
        e("v_mov_b32 v1, 0"); e("v_mov_b32 v2, s39")
        e("buffer_store_dword v2, v1, s[8:11], s3 offen offset:252")
        for j in range(nst[0]):
            e(f"v_mov_b32 v2, s{sSt+2*j}"); e(f"v_mov_b32 v3, s{sSt+2*j+1}")
            e(f"buffer_store_dwordx2 v[2:3], v1, s[8:11], s3 offen offset:{8*j}")
            e("s_nop 1")
    e("L_end:")
    e("s_endpgm")
    hdr = open('standalone__fft_conv__vision.s.ref').read().split('\n')
    out = []
    for l in hdr:
        if l.startswith('; @launch'): out.append(f"; @launch grid=(224,1,1) block=(256,1,1) lds={LDS}"); continue
        out.append(l)
        if l.startswith('standalone__fft_conv__vision_kernel:'): break
    if cfg.get('align12'): out = [l.replace('.p2align 8', '.p2align 12') for l in out]
    if any(t[0] == 'hop' for t in plan['init'] + plan['seq']):
        assert cfg.get('align12') and paths == 1
        import subprocess, re
        L = list(L)
        def addrs():
            open('_p.s', 'w').write('.amdgcn_target "amdgcn-amd-amdhsa--gfx950"\n.text\n' + '\n'.join(L) + '\n' + ''.join(f'L_pad{k}:\n' for k in range(8) if f'L_pad{k}:' not in L))
            subprocess.check_call('clang -x assembler -target amdgcn-amd-amdhsa -mcpu=gfx950 -c _p.s -o _p.o', shell=True)
            d = subprocess.check_output('llvm-objdump -d _p.o', shell=True).decode()
            return [int(m.group(1), 16) for m in re.finditer(r'// ([0-9A-F]{12}):', d)]
        k = 0; step = cfg.get('hopstep', 4096)
        while True:
            A = addrs(); idx = [i for i, l in enumerate(L) if not l.endswith(':')]; A = [a + 0x300 for a in A]
            assert len(A) == len(idx)
            nxt = [i for a, i in zip(A, idx) if a >= (k+1)*step]
            last = A[-1] < (k+2)*step + 64
            if not nxt: break
            L[nxt[0]:nxt[0]] = [f"L_pad{k}:", f"s_cbranch_vccnz L_main"]
            k += 1
            if last: break
        assert k == 2, k
    out += ["    "+l if not l.endswith(':') else l for l in L]
    out += """.section .rodata,"a"
.p2align 6
.amdhsa_kernel standalone__fft_conv__vision_kernel
  .amdhsa_next_free_vgpr 512
  .amdhsa_next_free_sgpr 102
  .amdhsa_accum_offset 256
  .amdhsa_group_segment_fixed_size 0
  .amdhsa_kernarg_size 40
  .amdhsa_user_sgpr_count 2
  .amdhsa_user_sgpr_kernarg_segment_ptr 1
  .amdhsa_system_sgpr_workgroup_id_x 1
.end_amdhsa_kernel""".split('\n')
    return '\n'.join(out)+'\n', stn

def plan_v1():
    init = [('W',0),('X',0),('X',7),('X',1),('X',8),('addr',),('X',2),('X',9),('X',3),('X',10),('W',1),('X',4),('X',11),('W',2),
            ('X',5),('X',12),('W',3),('X',6),('X',13),('W',4),('X',14),('X',15)]
    seq = []
    done = set()
    def U(lst):
        for i, g in lst:
            if (i, g) not in done: done.add((i, g)); seq.append(('u', i, g))
    seq += [('bar', [('W',0),('X',0),('X',7),('X',1),('X',8),('X',2),('X',9),('X',3),('X',10)]), ('stamp','b0'), ('wread',0)]
    U([(0,0),(1,0),(2,0)])
    seq += [('bar', [('W',1),('X',4),('X',11)], [0]), ('stamp','b1'), ('wread',1), ('dma',('W',5))]
    U([(3,0),(4,0),(0,1),(1,1),(2,1)])
    seq += [('bar', [('W',2),('X',5),('X',12)], [1]), ('stamp','b2'), ('wread',2), ('dma',('W',6))]
    U([(3,1),(4,1),(0,2),(1,2),(2,2)])
    seq += [('bar', [('W',3),('X',6),('X',13)], [2]), ('stamp','b3'), ('wread',3), ('dma',('W',7))]
    U([(3,2),(4,2),(0,3),(1,3),(2,3)])
    seq += [('bar', [('W',4),('X',14),('X',15)], [3]), ('stamp','b4'), ('wread',4), ('dma',('W',8))]
    U([(3,3),(4,3),(0,4),(1,4),(2,4)])
    for g in range(5, 9):
        seq += [('bar', [('W',g)]), ('stamp',f'b{g}'), ('wread',g)]
        U([(3,g-1),(4,g-1),(0,g),(1,g),(2,g)])
    U([(3,8),(4,8)])
    seq += [('stamp','phB')]
    for i in range(5, 9): U([(i, g) for g in range(9)])
    return {'init': init, 'seq': seq}

if __name__ == '__main__':
    cfg = {'plan': plan_v1()}
    for a in sys.argv[2:]:
        k, v = a.split('='); cfg[k] = json.loads(v) if v and v[0] in '0123456789[tf' else v
    if 'planf' in cfg:
        import plans; cfg['plan'] = getattr(plans, cfg['planf'])()
    s, stn = gen(cfg)
    open(sys.argv[1], 'w').write(s)
    print(stn)
```

```python
class P:
    def __init__(s): s.seq=[]; s.done=set()
    def U(s,lst):
        for i,g in lst:
            if (i,g) not in s.done: s.done.add((i,g)); s.seq.append(('u',i,g))
    def bar(s,tags,war=[],name=None):
        s.seq.append(('bar',tags,war))
        if name: s.seq.append(('stamp',name))
    def a(s,*t): s.seq += list(t)
W=lambda g:('W',g)
def XX(i): return [('X',i),('X',i+7)] if i not in (7,8) else [('X',i+7)]
def D(*toks): return [('dma',t) for t in toks]

def probe():
    r=v2()
    init=[W(0),('stamp','i0')]+XX(0)+XX(1)+[('addr',)]+XX(2)+XX(3)+XX(4)+XX(5)+[W(1),('stamp','i1'),
      ('wait',W(0),'aW0'),('wait',('X',9),'aX2'),('wait',('X',12),'aX5'),('wait',W(1),'aW1')]
    r['init']=init
    r['seq']=[t for t in r['seq'] if t[0]!='stamp' or t[1] in('b2','b4','b6','b8','phB')]
    return r

def v2():
    p=P()
    init=[W(0)]+XX(0)+XX(1)+[('addr',)]+XX(2)+XX(3)+XX(4)+XX(5)+[W(1)]
    p.bar([W(0)]+XX(0)+XX(1)+XX(2),name='b0'); p.a(('wread',0),*D(W(2)))
    p.U([(0,0),(1,0),(2,0)])
    p.bar(XX(3)+XX(4)+XX(5),name='b0x'); p.a(*D(W(3)))
    p.U([(3,0),(4,0),(5,0)])
    p.bar([W(1)],[0],name='b1'); p.a(('wread',1),*D(W(4),W(5)))
    p.U([(i,1) for i in range(6)])
    p.bar([W(2)],[1],name='b2'); p.a(('wread',2),*D(W(6)))
    p.U([(i,2) for i in range(5)])
    p.bar([W(3)],[2],name='b3'); p.a(('wread',3),*D(W(7)))
    p.U([(5,2)]+[(i,3) for i in range(4)])
    p.bar([W(4)],[3],name='b4'); p.a(('wread',4),*D(W(8),*XX(6),*XX(7),*XX(8)))
    p.U([(4,3)]+[(i,4) for i in range(4)])
    for g in range(5,9):
        p.bar([W(g)],name=f'b{g}'); p.a(('wread',g))
        p.U([(4,g-1)]+[(i,g) for i in range(4)])
    p.bar(XX(6)+XX(7)+XX(8))
    p.U([(4,8)])
    p.a(('stamp','phB'))
    for i in range(5,9): p.U([(i,g) for g in range(9)])
    return {'init':init,'seq':p.seq}
import gen
def v1few():
    r=gen.plan_v1()
    r['seq']=[t for t in r['seq'] if t[0]!='stamp' or t[1] in('b0','b2','b4','b6','b8','phB')]
    return r
def _probe(init):
    r=gen.plan_v1()
    r['init']=init
    r['seq']=[t for t in r['seq'] if t[0]!='stamp']
    return r
def wt(tok): return ('wait',tok,'a%s%d'%tok)
def probeA():
    xs=[2,3,1,0,4,5,6,7,8]
    init=[W(0),('addr',),W(1),W(2),W(3),W(4),('stamp','iW')]
    for i in xs: init+=XX(i)
    init+=[('stamp','iX')]+[wt(W(g)) for g in range(5)]+[wt(XX(i)[-1]) for i in xs]
    return _probe(init)
def probeB():
    xs=[2,3,1,0,4,5,6,7,8]
    init=[]
    for i in xs: init+=XX(i)
    init+=[('stamp','iX'),W(0),('addr',),W(1),W(2),W(3),W(4),('stamp','iW')]
    init+=[wt(XX(i)[-1]) for i in xs]+[wt(W(g)) for g in range(5)]
    return _probe(init)
def probeC():
    init=[W(0),*XX(2),('stamp','i0'),wt(W(0)),wt(('X',9)),W(1),*XX(3),('stamp','i1'),wt(W(1)),wt(('X',10)),
          W(2),('stamp','i2'),wt(W(2)),*XX(1),('stamp','i3'),wt(('X',8)),W(3),W(4),('stamp','i4'),wt(W(3)),wt(W(4)),('addr',)]
    for i in [0,4,5,6,7,8]: init+=XX(i)
    return _probe(init)
def v3(pf=True):
    p=P()
    init=([('PF',)] if pf else [])+[W(0)]+XX(2)+[W(1)]+XX(3)+[('addr',),W(2)]
    p.bar([W(0)]+XX(2),name='b0'); p.a(('wread',0),*D(*XX(1),W(3)))
    p.U([(2,0)])
    p.bar([W(1)],name='b1'); p.a(('wread',1))
    p.U([(2,1)])
    p.bar(XX(3)+[W(2)],[0],name='b2'); p.a(('wread',2),*D(*XX(0),W(4),W(5)))
    p.U([(3,0),(3,1),(2,2),(3,2)])
    p.bar(XX(1)+[W(3)],[1],name='b3'); p.a(('wread',3),*D(W(6)))
    p.U([(1,0),(1,1),(1,2),(2,3),(3,3)])
    p.bar(XX(0)+[W(4)],[2],name='b4'); p.a(('wread',4),*D(W(7)))
    p.U([(1,3),(0,0),(0,1),(0,2),(0,3),(2,4),(3,4)])
    p.bar([W(5)],[3],name='b5'); p.a(('wread',5),*D(W(8),*XX(4)))
    p.U([(1,4),(0,4),(2,5),(3,5)])
    p.bar([W(6)],name='b6'); p.a(('wread',6),*D(*XX(5)))
    p.U([(1,5),(0,5),(2,6),(3,6)])
    p.bar([W(7)],name='b7'); p.a(('wread',7),*D(*XX(6)))
    p.U([(1,6),(0,6),(2,7),(3,7)])
    p.bar([W(8)]+XX(4),name='b8'); p.a(('wread',8),*D(*XX(7),*XX(8)))
    p.U([(1,7),(0,7),(0,8),(1,8),(2,8),(3,8)])
    p.a(('stamp','phB'))
    p.U([(4,g) for g in range(7)])
    p.bar(XX(5)+XX(6)+XX(7)+XX(8),name='bx')
    for i in range(4,9): p.U([(i,g) for g in range(9)])
    return {'init':init,'seq':p.seq}
def v3n(): return v3(False)
def v4(pf=0):
    p=P()
    init=[W(0)]+XX(2)+([('PF',)] if pf else [])+[W(1)]+XX(3)+[('addr',),W(2)]+XX(1)
    p.bar([W(0)]+XX(2),name='b0'); p.a(('wread',0),('dsall',),*D(W(3),*XX(0),W(4)),('vm',2),('gap',3))
    p.U([(2,0)]); p.a(('vm',2))
    p.bar([W(1)]+XX(3),[0],name='b1'); p.a(('wread',1),*D(W(5)),('gap',4))
    p.U([(3,0),(2,1),(3,1)])
    p.bar([W(2)]+XX(1),[1],name='b2'); p.a(('wread',2),*D(W(6)))
    p.U([(1,0),(1,1),(2,2),(3,2),(1,2)])
    p.bar([W(3)]+XX(0),[2],name='b3'); p.a(('wread',3),*D(W(7)))
    p.U([(0,0),(0,1),(0,2),(2,3),(1,3),(0,3)])
    p.bar([W(4)],[3],name='b4'); p.a(('wread',4),*D(W(8),*XX(4),*XX(5),*XX(6),*XX(7),*XX(8)))
    p.U([(3,3),(2,4),(1,4),(0,4)])
    for g in range(5,9):
        p.bar([W(g)]+(XX(4) if g==8 else []),name=f'b{g}'); p.a(('wread',g))
        p.U([(3,g-1),(0,g),(1,g),(2,g)])
    p.U([(3,8)])
    p.a(('stamp','phB'))
    p.U([(4,g) for g in range(7)])
    p.bar(XX(5)+XX(6)+XX(7)+XX(8),name='bx')
    for i in range(4,9): p.U([(i,g) for g in range(9)])
    return {'init':init,'seq':p.seq}
def v4p(): return v4(1)
def addR(r,keep):
    q=[]
    for t in r['seq']:
        if t[0]=='stamp':
            if t[1] in keep: q+=[t,('stamp','R'+t[1])]
        else: q.append(t)
    r['seq']=q; return r
def v4r(): return addR(v4(),('b0','b2','b4','b6','b8','bx'))
def v5():
    p=P()
    init=[W(0)]+XX(2)+[W(1),('addr',)]+XX(3)+[('addr2',[0,1,2,3]),W(2),('addr2',[4,5,6,7,8])]+XX(1)
    p.bar([W(0)]+XX(2),name='b0'); p.a(('wread',0),('dsall',),*D(W(3),*XX(0),W(4)),('vm',2),('gap',2))
    p.U([(2,0)]); p.a(('vm',1))
    p.bar([W(1)]+XX(3),[0],name='b1'); p.a(('wread',1),*D(W(5)),('gap',3))
    p.U([(3,0),(2,1),(3,1)])
    p.bar([W(2)]+XX(1),[1],name='b2'); p.a(('wread',2),*D(W(6)))
    p.U([(1,0),(1,1),(2,2),(3,2),(1,2)])
    p.bar([W(3)]+XX(0),[2],name='b3'); p.a(('wread',3),*D(W(7)))
    p.U([(0,0),(0,1),(0,2),(2,3),(1,3),(0,3)])
    p.bar([W(4)],[3],name='b4'); p.a(('wread',4),*D(W(8),*XX(4)),('gap',4))
    p.U([(3,3),(2,4),(1,4),(0,4)])
    for g in range(5,9):
        p.bar([W(g)]+(XX(4) if g==8 else []),name=f'b{g}'); p.a(('wread',g))
        if g==6: p.a(*D(*XX(5),*XX(6),*XX(7),*XX(8)),('gap',6))
        p.U([(3,g-1),(0,g),(1,g),(2,g)])
    p.U([(3,8)])
    p.a(('stamp','phB'))
    p.U([(4,g) for g in range(7)])
    p.bar(XX(5)+XX(6)+XX(7)+XX(8),name='bx')
    for i in range(4,9): p.U([(i,g) for g in range(9)])
    return {'init':init,'seq':p.seq}
def v6():
    p=P()
    init=[W(0)]+XX(2)+[('stamp','i0'),('late',),W(1)]+XX(3)+[('stamp','i1'),('addr',)]
    p.bar([W(0)]+XX(2),name='b0'); p.a(('wread',0),('dsall',),*D(W(2),W(3),W(4)),('vm',3),('gap',2))
    p.U([(2,0)])
    p.bar([W(1)]+XX(3),[0],name='b1'); p.a(('wread',1),*D(*XX(1),W(5)),('gap',3))
    p.U([(3,0),(2,1)])
    p.bar([W(2)],[1],name='b2'); p.a(('wread',2),*D(*XX(0),W(6)))
    p.U([(3,1),(2,2)])
    p.bar([W(3)],[2],name='b3'); p.a(('wread',3),*D(W(7)))
    p.U([(3,2),(2,3)])
    p.bar([W(4)],[3],name='b4'); p.a(('wread',4),*D(W(8),*XX(4)))
    p.U([(3,3),(2,4)])
    p.bar(XX(1)+[W(5)],name='b5'); p.a(('wread',5))
    p.U([(3,4),(1,0),(2,5)])
    p.bar(XX(0)+[W(6)]); p.a(('wread',6))
    p.U([(3,5),(1,1),(2,6)])
    p.bar([W(7)]); p.a(('wread',7),*D(*XX(5),*XX(6),*XX(7),*XX(8)),('gap',6))
    p.U([(3,6),(1,2),(2,7)])
    p.bar([W(8)],name='b8'); p.a(('wread',8))
    p.U([(3,7),(1,3),(2,8)])
    p.U([(0,g) for g in range(9)]+[(1,g) for g in range(9)])
    p.bar(XX(4),name='phB')
    p.U([(3,8)]+[(4,g) for g in range(7)])
    p.bar(XX(5)+XX(6)+XX(7)+XX(8),name='bx')
    for i in range(4,9): p.U([(i,g) for g in range(9)])
    return {'init':init,'seq':p.seq}
def v6t():
    r=v6(); r['init']=XX(2)+[('TX','x'),W(0),('stamp','i0'),('late',),W(1)]+XX(3)+[('TX','o'),('stamp','i1'),('addr',)]
    return r
def keep(r,k):
    r['seq']=[t for t in r['seq'] if t[0]!='stamp' or t[1] in k]; return r
def v6few(): return keep(v6(),('b0','b1','b4','b5','b8','bx'))
```

```python
import sys, json
XP = 3456
XROWS = 16
WBASE = XROWS*XP
KGS = 4640
WSLOT = 4*KGS
NSLOT = 5
LDS = WBASE + NSLOT*WSLOT

def gen(cfg):
    stamps = cfg.get('stamps', False)
    L = []
    e = L.append
    vWA, vWS, vWA2, vWS2 = 1, 2, 3, 4
    vX = [5, 6, 7]
    vDW = [8, 9, 10, 11, 12]
    vDX = 13
    vOB, vOS = 14, 15
    vT = 16
    vF = 32
    NF = 4
    vAcc = 48
    vW0 = 132
    def wreg(idx):
        return ('a', 4*idx) if idx < 64 else ('v', vW0+4*(idx-64))
    def rr(kind, b, n): return f"{kind}[{b}:{b+n-1}]"
    def acc(r, t): return vAcc + 12*r + 4*t
    sX, sWt, sO = 4, 8, 12
    sRow = 16
    sWave = 32; sM0X = 33; sM0W = 34; sOut = 35; sTmp = 36; sG = 37; sOrow = 38
    sSt = 40
    nst = [0]; stn = []
    def stamp(name):
        if stamps:
            op = "s_memrealtime" if name.startswith('R') else "s_memtime"
            e(f"{op} s[{sSt+2*nst[0]}:{sSt+2*nst[0]+1}]"); nst[0] += 1; stn.append(name)
    rot = cfg.get('rot', 0)
    groups = [(q % 3, q // 3) for q in range(9)]
    vXg = [200+g for g in range(9)]; sWo = 84
    stamp('Rstart'); stamp('start')
    e("s_load_dwordx4 s[4:7], s[0:1], 0")
    e("s_load_dwordx2 s[12:13], s[0:1], 16")
    if stamps: e(f"s_load_dwordx2 s[96:97], s[0:1], {24 if stamps=='dbg' else 32}")
    e("s_cmp_ge_u32 s2, 224")
    e("s_cbranch_scc1 L_end")
    e("v_lshrrev_b32 v16, 6, v0")
    e("v_and_b32 v0, 63, v0")
    e("v_readfirstlane_b32 s32, v16")
    e("s_and_b32 s36, s2, 7"); e("s_mul_i32 s36, s36, 28"); e("s_lshr_b32 s37, s2, 3"); e("s_add_u32 s36, s36, s37")
    e("s_mul_i32 s37, s36, 4682"); e("s_lshr_b32 s37, s37, 16")
    e("s_mul_i32 s38, s37, 14"); e("s_sub_u32 s36, s36, s38")
    e("s_lshl_b32 s36, s36, 4")
    e("s_mul_i32 s33, s32, 1536")
    e("v_lshlrev_b32 v8, 4, v0")
    e("v_add_u32 v8, s33, v8")
    e("v_lshrrev_b32 v16, 5, v0")
    e("v_mul_u32_u24 v16, 53760, v16")
    e("v_add_u32 v9, v8, v16")
    e("v_add_u32 v10, 53760, v8")
    e(f"v_add_u32 v11, {2*53760}, v8")
    e(f"v_add_u32 v12, {2*53760+4096}, v8")
    e(f"s_mul_i32 s34, s32, {KGS}"); e(f"s_add_u32 s34, s34, {WBASE}")
    e("s_lshl_b32 s33, s32, 6")
    e("v_add_u32 v16, s33, v0")
    e("v_mul_u32_u24 v17, 171, v16")
    e("v_lshrrev_b32 v17, 11, v17")
    e("v_mul_u32_u24 v18, 12, v17")
    e("v_sub_u32 v16, v16, v18")
    e("v_lshrrev_b32 v18, 1, v17")
    e("v_and_b32 v18, 2, v18")
    e("v_xor_b32 v16, v16, v18")
    e("v_add_u32 v17, s36, v17")
    e("v_subrev_u32 v17, 2, v17")
    e("v_add_u32 v18, 224, v17")
    e("v_min_u32 v17, v17, v18")
    e("v_mul_u32_u24 v17, 192, v17")
    e("v_lshl_add_u32 v13, v16, 4, v17")
    e("s_lshl_b32 s33, s32, 10")
    e("s_mul_i32 s18, s38, 43008"); e(f"s_add_u32 s25, s18, {7*43008}")
    if rot:
        e("s_lshr_b32 s39, s2, 3"); e("s_mul_i32 s3, s39, 21846"); e("s_lshr_b32 s3, s3, 16")
        e("s_mul_i32 s93, s3, 3"); e("s_sub_u32 s93, s39, s93")
        e("s_mul_i32 s94, s3, 21846"); e("s_lshr_b32 s94, s94, 16"); e("s_mul_i32 s94, s94, 3"); e("s_sub_u32 s94, s3, s94")
    else:
        e("s_mov_b32 s93, 0"); e("s_mov_b32 s94, 0")
    e("s_mul_i32 s76, s93, 18432"); e("s_mul_i32 s80, s94, 6144"); e(f"s_add_u32 s{sWo}, s76, s80")
    def late():
        for j in (1, 2):
            e(f"s_add_u32 s{76+j}, s{75+j}, 18432"); e(f"s_cmp_eq_u32 s{76+j}, 55296"); e(f"s_cselect_b32 s{76+j}, 0, s{76+j}")
            e(f"s_add_u32 s{80+j}, s{79+j}, 6144"); e(f"s_cmp_eq_u32 s{80+j}, 18432"); e(f"s_cselect_b32 s{80+j}, 0, s{80+j}")
        for g in range(1, 9): e(f"s_add_u32 s{sWo+g}, s{76+g//3}, s{80+g%3}")
        e("s_add_u32 s39, s38, 222"); e("s_sub_u32 s16, s38, 2"); e("s_cmp_eq_u32 s38, 0")
        e("s_cselect_b32 s16, s39, s16"); e("s_mul_i32 s16, s16, 43008"); e("s_add_u32 s17, s16, 43008")
        for i in range(3, 16):
            if i != 9: e(f"s_add_u32 s{16+i}, s18, {(i-2)*43008}")
    e("s_cmp_eq_u32 s32, 3"); e("s_cselect_b32 s98, 0xffffff, -1"); e("s_cselect_b32 s99, 0, -1")
    e("s_waitcnt lgkmcnt(0)")
    stamp('karg')
    e("s_mov_b32 s8, s6"); e("s_mov_b32 s9, s7"); e("s_mov_b32 s10, 165888"); e("s_mov_b32 s11, 0x20000")
    e("s_mov_b32 s6, 9633792"); e("s_mov_b32 s7, 0x20000")
    e("s_mov_b32 s14, 9633792"); e("s_mov_b32 s15, 0x20000")
    vm = [0]
    ds = [0]
    vmdone = {}
    dsdone = {}
    def dmaW(g):
        c, kw = groups[g]; slot = g % NSLOT
        so = kw*18432 + c*6144
        out = []
        sG = sWo + g
        out.append(([f"s_add_u32 m0, s{sM0W}, {slot*WSLOT}", "s_nop 0",
                     f"buffer_load_dwordx4 v8, s[8:11], s{sG} offen lds"], 'vm', None))
        for m in (1, 2, 3):
            out.append(([f"buffer_load_dwordx4 v{8+m}, s[8:11], s{sG} offen offset:{1024*m} lds"], 'vm', None))
        out.append(([f"s_add_u32 m0, s{sM0W}, {slot*WSLOT+4096}", "s_mov_b32 exec_hi, 0",
                     f"buffer_load_dwordx4 v12, s[8:11], s{sG} offen lds", "s_mov_b32 exec_hi, -1"], 'vm', ('W', g)))
        return out
    def dmaX(i):
        return [([f"s_add_u32 m0, s{sM0X}, {i*XP}", "s_mov_b64 exec, s[98:99]",
                  f"buffer_load_dwordx4 v13, s[4:7], s{sRow+i} offen lds", "s_mov_b64 exec, -1"], 'vm', ('X', i))]
    def wread(g):
        slot = g % NSLOT; out = []
        for kh in (2, 1, 0):
            for t in range(3):
                k, b = wreg(g*9 + kh*3 + t)
                for half in range(2):
                    off = slot*WSLOT + kh*1536 + half*768
                    va = vWA if t < 2 else vWS
                    if t == 1: off += 32
                    if slot >= 3: off -= 3*WSLOT; va += 2
                    out.append(([f"ds_read_b64_tr_b16 {rr(k, b+2*half, 2)}, v{va} offset:{off}"], 'ds', ('w', g, kh, t) if half else None))
        return out
    def put(item):
        lines, kind, tag = item
        for l in lines: e(l)
        if kind == 'vm':
            vm[0] += 1
            if tag: vmdone[tag] = vm[0]
        elif kind == 'ds':
            ds[0] += 1
            if tag: dsdone[tag] = ds[0]
    dswaited = [0]
    def waitds(tag):
        n = dsdone[tag]
        if n > dswaited[0]:
            e(f"s_waitcnt lgkmcnt({min(15, ds[0]-n)})"); dswaited[0] = max(n, ds[0]-15)
    plan = cfg['plan']
    first = True
    for tok in plan['init']:
        if tok[0] == 'W':
            for it in dmaW(tok[1]): put(it)
        elif tok[0] == 'X':
            for it in dmaX(tok[1]): put(it)
        elif tok[0] == 'stamp': stamp(tok[1])
        elif tok[0] == 'PF':
            e("s_lshr_b32 s39, s2, 3"); e("s_lshl_b32 s39, s39, 2"); e("s_add_u32 s39, s39, s32")
            e("s_mul_i32 s3, s39, 1821"); e("s_lshr_b32 s3, s3, 16"); e("s_mul_i32 s3, s3, 36"); e("s_sub_u32 s39, s39, s3")
            e("s_mul_i32 s39, s39, 4608")
            e("v_mul_u32_u24 v20, 72, v0"); e("v_and_b32 v20, 0xfffffffc, v20")
            put(([f"buffer_load_dword v21, v20, s[8:11], s39 offen"], 'vm', None))
        elif tok[0] == 'wait':
            e(f"s_waitcnt vmcnt({vm[0]-vmdone[tuple(tok[1])]})"); stamp(tok[2])
        elif tok[0] == 'addr':
            e("v_lshrrev_b32 v16, 4, v0")
            e("v_and_b32 v17, 15, v0")
            e("s_and_b32 s39, s32, 1")
            e("s_lshr_b32 s3, s32, 1")
            e(f"v_mul_u32_u24 v1, {KGS}, v16")
            e("v_bfe_u32 v18, v0, 2, 2"); e("v_mul_u32_u24 v18, 192, v18"); e("v_add_u32 v1, v1, v18")
            e("v_and_b32 v18, 3, v0"); e("v_lshl_add_u32 v1, v18, 3, v1")
            e(f"v_add_u32 v1, {WBASE}, v1")
            e("s_lshl_b32 s35, s39, 5"); e("s_add_u32 s35, s35, 64")
            e("v_add_u32 v2, s35, v1")
            e("s_lshl_b32 s39, s39, 7")
            e("v_add_u32 v1, s39, v1")
            e(f"v_add_u32 v3, {3*WSLOT}, v1"); e(f"v_add_u32 v4, {3*WSLOT}, v2")
            e("v_mul_u32_u24 v14, 192, v17")
            e("v_lshl_add_u32 v15, v16, 3, v14"); e("v_add_u32 v15, s35, v15")
            e("v_and_b32 v18, 1, v16"); e("v_lshl_add_u32 v14, v18, 5, v14")
            e("v_lshrrev_b32 v18, 1, v16"); e("v_lshl_add_u32 v14, v18, 4, v14"); e("v_add_u32 v14, s39, v14")
            e(f"s_mul_i32 s39, s3, {7*XP}")
            e("s_sub_u32 s93, 2, s93")
            for j in range(3):
                e("v_add_u32 v18, s93, v17")
                if j < 2: e("s_sub_u32 s93, s93, 1"); e("s_cselect_b32 s93, 2, s93")
                e("v_lshrrev_b32 v19, 1, v18"); e("v_and_b32 v19, 2, v19"); e("v_xor_b32 v19, v19, v16")
                e("v_mul_u32_u24 v18, 192, v18"); e(f"v_lshl_add_u32 v{vX[j]}, v19, 4, v18")
            for j in range(3):
                e(f"s_lshr_b32 s{80+j}, s{80+j}, 11"); e(f"s_mul_i32 s{80+j}, s{80+j}, 21"); e(f"s_add_u32 s{80+j}, s{80+j}, 63");
                e(f"s_and_b32 s{80+j}, s{80+j}, 0xc0"); e(f"s_add_u32 s{80+j}, s{80+j}, s39")
            for g in range(9): e(f"v_add_u32 v{vXg[g]}, s{80+g%3}, v{vX[g//3]}")
            e("s_mul_i32 s3, s3, 7"); e("s_add_u32 s3, s3, s38"); e("s_mul_i32 s3, s3, 224"); e("s_add_u32 s3, s3, s36")
            e("s_mul_i32 s35, s3, 192")
        elif tok[0] == 'TX':
            e("v_and_b32 v20, 15, v0"); e("v_add_u32 v20, s38, v20"); e("s_mul_i32 s3, s36, 192")
            if 'o' in tok[1]:
                e("v_mul_u32_u24 v22, 43008, v20")
                put(([f"buffer_load_dword v23, v22, s[12:15], s3 offen"], 'vm', None))
            if 'x' in tok[1]:
                e("v_subrev_u32 v20, 2, v20"); e("v_add_u32 v21, 224, v20"); e("v_min_u32 v20, v20, v21")
                e("v_mul_u32_u24 v20, 43008, v20")
                put(([f"buffer_load_dword v21, v20, s[4:7], s3 offen"], 'vm', None))
        elif tok[0] == 'late': late()
        elif tok[0] == 'addr2':
            for g in tok[1]:
                e(f"s_cmp_ge_u32 s{sWo+g}, 18432"); e("s_cselect_b64 vcc, -1, 0"); e(f"s_cselect_b32 s3, 18432, 0")
                e(f"v_cndmask_b32 v{vXg[g]}, v{vX[0]}, v{vX[1]}, vcc")
                e(f"s_cmp_ge_u32 s{sWo+g}, 36864"); e("s_cselect_b64 vcc, -1, 0"); e(f"s_cselect_b32 s3, 36864, s3")
                e(f"v_cndmask_b32 v{vXg[g]}, v{vXg[g]}, v{vX[2]}, vcc")
                e(f"s_sub_u32 s3, s{sWo+g}, s3"); e("s_lshr_b32 s3, s3, 12"); e("s_add_u32 s3, s3, 1"); e("s_lshr_b32 s3, s3, 1"); e("s_lshl_b32 s3, s3, 6")
                e(f"v_add_u32 v{vXg[g]}, s3, v{vXg[g]}")
    stamp('issued')
    seq = plan['seq']
    units = [t for t in seq if t[0] == 'u']
    assert sorted((t[1], t[2]) for t in units) == [(i, g) for i in range(9) for g in range(9)]
    remaining = {r: 81 for r in range(7)}
    started = set()
    side = []
    uidx = [0]
    fr_issued = [0]
    barpos = [0]; ubar = []; nb = 0
    for t in seq:
        if t[0] == 'bar': nb += 1
        if t[0] == 'u': ubar.append(nb)
    xavail = {}; nb = 0
    for t in seq:
        if t[0] == 'bar':
            nb += 1
            for tg in t[1]:
                if tg[0] == 'X': xavail[tg[1]] = nb
    def xbar(i): return max(xavail[i], xavail[i+7])
    curbar = [0]
    PF = cfg.get('pf', 2)
    def frag_item(n):
        _, i, g = units[n]; c, kw = groups[g]
        return ([f"ds_read_b128 v[{vF+4*(n%NF)}:{vF+4*(n%NF)+3}], v{vXg[g]} offset:{i*XP}"], 'ds', ('f', n))
    def try_frags():
        out = []
        while fr_issued[0] < len(units) and fr_issued[0] <= uidx[0]+PF and xbar(units[fr_issued[0]][1]) <= curbar[0]:
            out.append(frag_item(fr_issued[0])); fr_issued[0] += 1
        return out
    pend_store = []
    nm = [0]
    tset = [0]
    def store_items(r):
        T = vT + 8*(tset[0] & 1); tset[0] += 1
        a = lambda t: acc(r, t)
        cv = lambda d, s: f"v_cvt_pk_bf16_f32 v{d}, v{s}, v{s+1}"
        nt = cfg.get('stflag', '')
        return [([cv(T, a(0)), cv(T+1, a(0)+2)], 'v', None), ([cv(T+2, a(1)), cv(T+3, a(1)+2)], 'v', None),
                ([cv(T+4, a(2)), cv(T+5, a(2)+2)], 'v', None),
                ([f"s_add_u32 s{sOrow}, s{sOut}, {r*43008}", f"v_permlane16_swap_b32 v{T}, v{T+2}"], 'v', None),
                ([f"v_permlane16_swap_b32 v{T+1}, v{T+3}"], 'v', None),
                ([f"buffer_store_dwordx2 v[{T+4}:{T+5}], v{vOS}, s[12:15], s{sOrow} offen {nt}"], 'vm', None),
                ([f"buffer_store_dwordx4 v[{T}:{T+3}], v{vOB}, s[12:15], s{sOrow} offen {nt}"], 'vm', None)]
    dq = []; vq = []; sq = []
    def flush(q, pred):
        while q and pred(): put(q.pop(0))
    lastvm = [-99]
    vmgap = [cfg.get('vmgap', 4)]
    for t in seq:
        if t[0] == 'stamp': stamp(t[1])
        elif t[0] == 'gap': vmgap[0] = t[1]
        elif t[0] == 'vm':
            for _ in range(t[1]):
                if vq: put(vq.pop(0))
            lastvm[0] = nm[0]
        elif t[0] == 'dsall': flush(dq, lambda: True)
        elif t[0] == 'bar':
            for g in t[2] if len(t) > 2 else []:
                flush(dq, lambda: ('w', g, 0, 2) not in dsdone)
                waitds(('w', g, 0, 2))
            for tg in t[1]: flush(vq, lambda: tuple(tg) not in vmdone)
            need = max(vmdone[tuple(tg)] for tg in t[1]) if t[1] else 0
            if need: e(f"s_waitcnt vmcnt({vm[0]-need})")
            e("s_barrier"); curbar[0] += 1
            for it in try_frags(): put(it)
        elif t[0] == 'wread':
            dq.extend(wread(t[1]))
        elif t[0] == 'dma':
            vq.extend(dmaW(t[1][1]) if t[1][0] == 'W' else dmaX(t[1][1]))
        elif t[0] == 'u':
            n = uidx[0]; _, i, g = t
            assert fr_issued[0] > n, (t, "frag not issued")
            for kh in (2, 1, 0):
                r = i - 2 + kh
                if not (0 <= r <= 6): continue
                for tt in range(3):
                    tag = ('w', g, kh, tt)
                    flush(dq, lambda: tag not in dsdone)
                    waitds(tag); waitds(('f', n))
                    k, b = wreg(g*9 + kh*3 + tt)
                    A = acc(r, tt)
                    cin = f"v[{A}:{A+3}]" if (r, tt) in started else "0"
                    started.add((r, tt))
                    e(f"v_mfma_f32_16x16x32_bf16 v[{A}:{A+3}], {rr(k, b, 4)}, v[{vF+4*(n%NF)}:{vF+4*(n%NF)+3}], {cin}")
                    nm[0] += 1
                    if pend_store and not sq and nm[0] - pend_store[0][1] >= 9:
                        sq.extend(store_items(pend_store.pop(0)[0]))
                    if vq and nm[0] - lastvm[0] >= vmgap[0]:
                        put(vq.pop(0)); lastvm[0] = nm[0]
                    elif dq:
                        for _ in range(cfg.get('dsrate', 2)):
                            if dq: put(dq.pop(0))
                    elif sq:
                        if sq[0][1] != 'vm' or nm[0] - lastvm[0] >= cfg.get('stgap', 2):
                            if sq[0][1] == 'vm': lastvm[0] = nm[0]
                            put(sq.pop(0))
                remaining[r] -= 3
                if remaining[r] == 0: pend_store.append((r, nm[0]))
            uidx[0] += 1
            for it in try_frags(): put(it)
    stamp('mfma_done')
    assert not vq and not dq
    if sq: e('s_nop 1')
    while sq: put(sq.pop(0))
    if pend_store: e("s_nop 7")
    for r, _ in pend_store:
        its = store_items(r)
        for j, it in enumerate(its):
            if j == 3: e("s_nop 1")
            put(it)
    if stamps:
        stamp('stores_issued')
        e("s_waitcnt vmcnt(0)")
        stamp('end'); stamp('Rend')
        e("s_getreg_b32 s39, hwreg(HW_REG_XCC_ID)")
        e("s_waitcnt lgkmcnt(0)")
        e("s_mov_b32 s8, s96"); e("s_mov_b32 s9, s97"); e("s_mov_b32 s10, 0x100000")
        if stamps == 'dbg':
            e("s_cmp_lg_u32 s32, 0"); e("s_cbranch_scc1 L_end")
            e("s_mov_b32 s10, 256"); e("v_mov_b32 v1, 0"); e("s_mov_b64 exec, 1")
            e(f"s_not_b32 s3, s{sSt}"); e("v_mov_b32 v2, s3"); e("buffer_atomic_umax v2, v1, s[8:11], 0 offen")
            e(f"v_mov_b32 v3, s{sSt+2*(nst[0]-1)}"); e("buffer_atomic_umax v3, v1, s[8:11], 0 offen offset:4")
            e(f"v_mov_b32 v4, s{sSt}"); e("buffer_atomic_umax v4, v1, s[8:11], 0 offen offset:8")
            for j in range(2, nst[0]-1):
                if j+1 > 15: break
                e(f"s_sub_u32 s3, s{sSt+2*j}, s{sSt+2}"); e(f"v_mov_b32 v{5+j}, s3")
                e(f"buffer_atomic_add v{5+j}, v1, s[8:11], 0 offen offset:{4*(j+1)}")
            e("s_endpgm")
        e("s_lshl_b32 s3, s2, 2"); e("s_add_u32 s3, s3, s32"); e("s_lshl_b32 s3, s3, 8")
        e("v_mov_b32 v1, 0"); e("v_mov_b32 v2, s39")
        e("buffer_store_dword v2, v1, s[8:11], s3 offen offset:252")
        for j in range(nst[0]):
            e(f"v_mov_b32 v2, s{sSt+2*j}"); e(f"v_mov_b32 v3, s{sSt+2*j+1}")
            e(f"buffer_store_dwordx2 v[2:3], v1, s[8:11], s3 offen offset:{8*j}")
            e("s_nop 1")
    e("L_end:")
    e("s_endpgm")
    hdr = open('standalone__fft_conv__vision.s.ref').read().split('\n')
    out = []
    for l in hdr:
        if l.startswith('; @launch'): out.append(f"; @launch grid=(224,1,1) block=(256,1,1) lds={LDS}"); continue
        out.append(l)
        if l.startswith('standalone__fft_conv__vision_kernel:'): break
    out += ["    "+l if not l.endswith(':') else l for l in L]
    out += """.section .rodata,"a"
.p2align 6
.amdhsa_kernel standalone__fft_conv__vision_kernel
  .amdhsa_next_free_vgpr 512
  .amdhsa_next_free_sgpr 102
  .amdhsa_accum_offset 256
  .amdhsa_group_segment_fixed_size 0
  .amdhsa_kernarg_size 40
  .amdhsa_user_sgpr_count 2
  .amdhsa_user_sgpr_kernarg_segment_ptr 1
  .amdhsa_system_sgpr_workgroup_id_x 1
.end_amdhsa_kernel""".split('\n')
    return '\n'.join(out)+'\n', stn

def plan_v1():
    init = [('W',0),('X',0),('X',7),('X',1),('X',8),('addr',),('X',2),('X',9),('X',3),('X',10),('W',1),('X',4),('X',11),('W',2),
            ('X',5),('X',12),('W',3),('X',6),('X',13),('W',4),('X',14),('X',15)]
    seq = []
    done = set()
    def U(lst):
        for i, g in lst:
            if (i, g) not in done: done.add((i, g)); seq.append(('u', i, g))
    seq += [('bar', [('W',0),('X',0),('X',7),('X',1),('X',8),('X',2),('X',9),('X',3),('X',10)]), ('stamp','b0'), ('wread',0)]
    U([(0,0),(1,0),(2,0)])
    seq += [('bar', [('W',1),('X',4),('X',11)], [0]), ('stamp','b1'), ('wread',1), ('dma',('W',5))]
    U([(3,0),(4,0),(0,1),(1,1),(2,1)])
    seq += [('bar', [('W',2),('X',5),('X',12)], [1]), ('stamp','b2'), ('wread',2), ('dma',('W',6))]
    U([(3,1),(4,1),(0,2),(1,2),(2,2)])
    seq += [('bar', [('W',3),('X',6),('X',13)], [2]), ('stamp','b3'), ('wread',3), ('dma',('W',7))]
    U([(3,2),(4,2),(0,3),(1,3),(2,3)])
    seq += [('bar', [('W',4),('X',14),('X',15)], [3]), ('stamp','b4'), ('wread',4), ('dma',('W',8))]
    U([(3,3),(4,3),(0,4),(1,4),(2,4)])
    for g in range(5, 9):
        seq += [('bar', [('W',g)]), ('stamp',f'b{g}'), ('wread',g)]
        U([(3,g-1),(4,g-1),(0,g),(1,g),(2,g)])
    U([(3,8),(4,8)])
    seq += [('stamp','phB')]
    for i in range(5, 9): U([(i, g) for g in range(9)])
    return {'init': init, 'seq': seq}

if __name__ == '__main__':
    cfg = {'plan': plan_v1()}
    for a in sys.argv[2:]:
        k, v = a.split('='); cfg[k] = json.loads(v) if v and v[0] in '0123456789[tf' else v
    if 'planf' in cfg:
        import plans; cfg['plan'] = getattr(plans, cfg['planf'])()
    s, stn = gen(cfg)
    open(sys.argv[1], 'w').write(s)
    print(stn)
```

```python
class P:
    def __init__(s): s.seq=[]; s.done=set()
    def U(s,lst):
        for i,g in lst:
            if (i,g) not in s.done: s.done.add((i,g)); s.seq.append(('u',i,g))
    def bar(s,tags,war=[],name=None):
        s.seq.append(('bar',tags,war))
        if name: s.seq.append(('stamp',name))
    def a(s,*t): s.seq += list(t)
W=lambda g:('W',g)
def XX(i): return [('X',i),('X',i+7)] if i not in (7,8) else [('X',i+7)]
def D(*toks): return [('dma',t) for t in toks]

def probe():
    r=v2()
    init=[W(0),('stamp','i0')]+XX(0)+XX(1)+[('addr',)]+XX(2)+XX(3)+XX(4)+XX(5)+[W(1),('stamp','i1'),
      ('wait',W(0),'aW0'),('wait',('X',9),'aX2'),('wait',('X',12),'aX5'),('wait',W(1),'aW1')]
    r['init']=init
    r['seq']=[t for t in r['seq'] if t[0]!='stamp' or t[1] in('b2','b4','b6','b8','phB')]
    return r

def v2():
    p=P()
    init=[W(0)]+XX(0)+XX(1)+[('addr',)]+XX(2)+XX(3)+XX(4)+XX(5)+[W(1)]
    p.bar([W(0)]+XX(0)+XX(1)+XX(2),name='b0'); p.a(('wread',0),*D(W(2)))
    p.U([(0,0),(1,0),(2,0)])
    p.bar(XX(3)+XX(4)+XX(5),name='b0x'); p.a(*D(W(3)))
    p.U([(3,0),(4,0),(5,0)])
    p.bar([W(1)],[0],name='b1'); p.a(('wread',1),*D(W(4),W(5)))
    p.U([(i,1) for i in range(6)])
    p.bar([W(2)],[1],name='b2'); p.a(('wread',2),*D(W(6)))
    p.U([(i,2) for i in range(5)])
    p.bar([W(3)],[2],name='b3'); p.a(('wread',3),*D(W(7)))
    p.U([(5,2)]+[(i,3) for i in range(4)])
    p.bar([W(4)],[3],name='b4'); p.a(('wread',4),*D(W(8),*XX(6),*XX(7),*XX(8)))
    p.U([(4,3)]+[(i,4) for i in range(4)])
    for g in range(5,9):
        p.bar([W(g)],name=f'b{g}'); p.a(('wread',g))
        p.U([(4,g-1)]+[(i,g) for i in range(4)])
    p.bar(XX(6)+XX(7)+XX(8))
    p.U([(4,8)])
    p.a(('stamp','phB'))
    for i in range(5,9): p.U([(i,g) for g in range(9)])
    return {'init':init,'seq':p.seq}
import gen
def v1few():
    r=gen.plan_v1()
    r['seq']=[t for t in r['seq'] if t[0]!='stamp' or t[1] in('b0','b2','b4','b6','b8','phB')]
    return r
def _probe(init):
    r=gen.plan_v1()
    r['init']=init
    r['seq']=[t for t in r['seq'] if t[0]!='stamp']
    return r
def wt(tok): return ('wait',tok,'a%s%d'%tok)
def probeA():
    xs=[2,3,1,0,4,5,6,7,8]
    init=[W(0),('addr',),W(1),W(2),W(3),W(4),('stamp','iW')]
    for i in xs: init+=XX(i)
    init+=[('stamp','iX')]+[wt(W(g)) for g in range(5)]+[wt(XX(i)[-1]) for i in xs]
    return _probe(init)
def probeB():
    xs=[2,3,1,0,4,5,6,7,8]
    init=[]
    for i in xs: init+=XX(i)
    init+=[('stamp','iX'),W(0),('addr',),W(1),W(2),W(3),W(4),('stamp','iW')]
    init+=[wt(XX(i)[-1]) for i in xs]+[wt(W(g)) for g in range(5)]
    return _probe(init)
def probeC():
    init=[W(0),*XX(2),('stamp','i0'),wt(W(0)),wt(('X',9)),W(1),*XX(3),('stamp','i1'),wt(W(1)),wt(('X',10)),
          W(2),('stamp','i2'),wt(W(2)),*XX(1),('stamp','i3'),wt(('X',8)),W(3),W(4),('stamp','i4'),wt(W(3)),wt(W(4)),('addr',)]
    for i in [0,4,5,6,7,8]: init+=XX(i)
    return _probe(init)
def v3(pf=True):
    p=P()
    init=([('PF',)] if pf else [])+[W(0)]+XX(2)+[W(1)]+XX(3)+[('addr',),W(2)]
    p.bar([W(0)]+XX(2),name='b0'); p.a(('wread',0),*D(*XX(1),W(3)))
    p.U([(2,0)])
    p.bar([W(1)],name='b1'); p.a(('wread',1))
    p.U([(2,1)])
    p.bar(XX(3)+[W(2)],[0],name='b2'); p.a(('wread',2),*D(*XX(0),W(4),W(5)))
    p.U([(3,0),(3,1),(2,2),(3,2)])
    p.bar(XX(1)+[W(3)],[1],name='b3'); p.a(('wread',3),*D(W(6)))
    p.U([(1,0),(1,1),(1,2),(2,3),(3,3)])
    p.bar(XX(0)+[W(4)],[2],name='b4'); p.a(('wread',4),*D(W(7)))
    p.U([(1,3),(0,0),(0,1),(0,2),(0,3),(2,4),(3,4)])
    p.bar([W(5)],[3],name='b5'); p.a(('wread',5),*D(W(8),*XX(4)))
    p.U([(1,4),(0,4),(2,5),(3,5)])
    p.bar([W(6)],name='b6'); p.a(('wread',6),*D(*XX(5)))
    p.U([(1,5),(0,5),(2,6),(3,6)])
    p.bar([W(7)],name='b7'); p.a(('wread',7),*D(*XX(6)))
    p.U([(1,6),(0,6),(2,7),(3,7)])
    p.bar([W(8)]+XX(4),name='b8'); p.a(('wread',8),*D(*XX(7),*XX(8)))
    p.U([(1,7),(0,7),(0,8),(1,8),(2,8),(3,8)])
    p.a(('stamp','phB'))
    p.U([(4,g) for g in range(7)])
    p.bar(XX(5)+XX(6)+XX(7)+XX(8),name='bx')
    for i in range(4,9): p.U([(i,g) for g in range(9)])
    return {'init':init,'seq':p.seq}
def v3n(): return v3(False)
def v4(pf=0):
    p=P()
    init=[W(0)]+XX(2)+([('PF',)] if pf else [])+[W(1)]+XX(3)+[('addr',),W(2)]+XX(1)
    p.bar([W(0)]+XX(2),name='b0'); p.a(('wread',0),('dsall',),*D(W(3),*XX(0),W(4)),('vm',2),('gap',3))
    p.U([(2,0)]); p.a(('vm',2))
    p.bar([W(1)]+XX(3),[0],name='b1'); p.a(('wread',1),*D(W(5)),('gap',4))
    p.U([(3,0),(2,1),(3,1)])
    p.bar([W(2)]+XX(1),[1],name='b2'); p.a(('wread',2),*D(W(6)))
    p.U([(1,0),(1,1),(2,2),(3,2),(1,2)])
    p.bar([W(3)]+XX(0),[2],name='b3'); p.a(('wread',3),*D(W(7)))
    p.U([(0,0),(0,1),(0,2),(2,3),(1,3),(0,3)])
    p.bar([W(4)],[3],name='b4'); p.a(('wread',4),*D(W(8),*XX(4),*XX(5),*XX(6),*XX(7),*XX(8)))
    p.U([(3,3),(2,4),(1,4),(0,4)])
    for g in range(5,9):
        p.bar([W(g)]+(XX(4) if g==8 else []),name=f'b{g}'); p.a(('wread',g))
        p.U([(3,g-1),(0,g),(1,g),(2,g)])
    p.U([(3,8)])
    p.a(('stamp','phB'))
    p.U([(4,g) for g in range(7)])
    p.bar(XX(5)+XX(6)+XX(7)+XX(8),name='bx')
    for i in range(4,9): p.U([(i,g) for g in range(9)])
    return {'init':init,'seq':p.seq}
def v4p(): return v4(1)
def addR(r,keep):
    q=[]
    for t in r['seq']:
        if t[0]=='stamp':
            if t[1] in keep: q+=[t,('stamp','R'+t[1])]
        else: q.append(t)
    r['seq']=q; return r
def v4r(): return addR(v4(),('b0','b2','b4','b6','b8','bx'))
def v5():
    p=P()
    init=[W(0)]+XX(2)+[W(1),('addr',)]+XX(3)+[('addr2',[0,1,2,3]),W(2),('addr2',[4,5,6,7,8])]+XX(1)
    p.bar([W(0)]+XX(2),name='b0'); p.a(('wread',0),('dsall',),*D(W(3),*XX(0),W(4)),('vm',2),('gap',2))
    p.U([(2,0)]); p.a(('vm',1))
    p.bar([W(1)]+XX(3),[0],name='b1'); p.a(('wread',1),*D(W(5)),('gap',3))
    p.U([(3,0),(2,1),(3,1)])
    p.bar([W(2)]+XX(1),[1],name='b2'); p.a(('wread',2),*D(W(6)))
    p.U([(1,0),(1,1),(2,2),(3,2),(1,2)])
    p.bar([W(3)]+XX(0),[2],name='b3'); p.a(('wread',3),*D(W(7)))
    p.U([(0,0),(0,1),(0,2),(2,3),(1,3),(0,3)])
    p.bar([W(4)],[3],name='b4'); p.a(('wread',4),*D(W(8),*XX(4)),('gap',4))
    p.U([(3,3),(2,4),(1,4),(0,4)])
    for g in range(5,9):
        p.bar([W(g)]+(XX(4) if g==8 else []),name=f'b{g}'); p.a(('wread',g))
        if g==6: p.a(*D(*XX(5),*XX(6),*XX(7),*XX(8)),('gap',6))
        p.U([(3,g-1),(0,g),(1,g),(2,g)])
    p.U([(3,8)])
    p.a(('stamp','phB'))
    p.U([(4,g) for g in range(7)])
    p.bar(XX(5)+XX(6)+XX(7)+XX(8),name='bx')
    for i in range(4,9): p.U([(i,g) for g in range(9)])
    return {'init':init,'seq':p.seq}
def v6():
    p=P()
    init=[W(0)]+XX(2)+[('stamp','i0'),('late',),W(1)]+XX(3)+[('stamp','i1'),('addr',)]
    p.bar([W(0)]+XX(2),name='b0'); p.a(('wread',0),('dsall',),*D(W(2),W(3),W(4)),('vm',3),('gap',2))
    p.U([(2,0)])
    p.bar([W(1)]+XX(3),[0],name='b1'); p.a(('wread',1),*D(*XX(1),W(5)),('gap',3))
    p.U([(3,0),(2,1)])
    p.bar([W(2)],[1],name='b2'); p.a(('wread',2),*D(*XX(0),W(6)))
    p.U([(3,1),(2,2)])
    p.bar([W(3)],[2],name='b3'); p.a(('wread',3),*D(W(7)))
    p.U([(3,2),(2,3)])
    p.bar([W(4)],[3],name='b4'); p.a(('wread',4),*D(W(8),*XX(4)))
    p.U([(3,3),(2,4)])
    p.bar(XX(1)+[W(5)],name='b5'); p.a(('wread',5))
    p.U([(3,4),(1,0),(2,5)])
    p.bar(XX(0)+[W(6)]); p.a(('wread',6))
    p.U([(3,5),(1,1),(2,6)])
    p.bar([W(7)]); p.a(('wread',7),*D(*XX(5),*XX(6),*XX(7),*XX(8)),('gap',6))
    p.U([(3,6),(1,2),(2,7)])
    p.bar([W(8)],name='b8'); p.a(('wread',8))
    p.U([(3,7),(1,3),(2,8)])
    p.U([(0,g) for g in range(9)]+[(1,g) for g in range(9)])
    p.bar(XX(4),name='phB')
    p.U([(3,8)]+[(4,g) for g in range(7)])
    p.bar(XX(5)+XX(6)+XX(7)+XX(8),name='bx')
    for i in range(4,9): p.U([(i,g) for g in range(9)])
    return {'init':init,'seq':p.seq}
def v6t():
    r=v6(); r['init']=XX(2)+[('TX','x'),W(0),('stamp','i0'),('late',),W(1)]+XX(3)+[('TX','o'),('stamp','i1'),('addr',)]
    return r
def keep(r,k):
    r['seq']=[t for t in r['seq'] if t[0]!='stamp' or t[1] in k]; return r
def v6few(): return keep(v6(),('b0','b1','b4','b5','b8','bx'))
def v7():
    p=P()
    init=XX(2)+[W(0),('late',)]+XX(3)+[W(1)]+XX(1)+[('addr',)]
    p.bar([W(0)]+XX(2),name='b0'); p.a(('wread',0),('dsall',),*D(W(2),*XX(0),W(3),W(4)),('vm',2),('gap',2),('stag',0))
    p.U([(2,0)])
    p.bar([W(1)]+XX(3),[0],name='b1'); p.a(('wread',1),*D(W(5)),('gap',4),('stag',1))
    p.U([(3,0),(2,1),(3,1)])
    p.bar([W(2)]+XX(1),[1],name='b2'); p.a(('wread',2),*D(W(6)))
    p.U([(1,0),(1,1),(2,2)])
    p.bar([W(3)]+XX(0),[2],name='b3'); p.a(('wread',3),*D(W(7)))
    p.U([(3,2),(1,2),(0,0),(0,1),(0,2)])
    p.bar([W(4)],[3],name='b4'); p.a(('wread',4),*D(W(8),*XX(4)))
    p.U([(2,3),(3,3),(1,3)])
    for g in range(5,9):
        p.bar([W(g)],name=f'b{g}'); p.a(('wread',g))
        if g==7: p.a(*D(*XX(5),*XX(6),*XX(7),*XX(8)),('gap',8))
        p.U([(0,g-2),(2,g-1),(3,g-1),(1,g-1)])
    p.bar(XX(4),name='phB')
    p.U([(0,7),(0,8),(1,8),(2,8),(3,8)]+[(4,g) for g in range(6)])
    p.bar(XX(5)+XX(6)+XX(7)+XX(8),name='bx')
    for i in range(4,9): p.U([(i,g) for g in range(9)])
    return {'init':init,'seq':p.seq}
def v7h():
    r=v7(); r['init']=r['init']+[('hop',)]; return r
def v6h():
    r=v6(); r['init']=r['init']+[('hop',)]; return r
def v7e():
    r=v7(); i=r['init']; r['init']=i[:-1]+[('hop',),i[-1]]; return r
def hop_at(r,n):
    i=r['init']; r['init']=i[:n]+[('hop',)]+i[n:]; return r
def v7f(): return hop_at(v7(),3)
def v7g(): return hop_at(v7(),7)
def v6f(): return hop_at(v6(),3)
def v6g(): return hop_at(v6(),8)
def v8(extra=1,gap=4):
    p=P()
    init=XX(2)+[W(0),('hop',),('late',)]+XX(3)+[W(1)]+XX(1)+[('addr',)]+([W(2)]+XX(0) if extra else [])
    p.bar([W(0)]+XX(2),name='b0'); p.a(('wread',0),('dsall',),*D(*([] if extra else [W(2)]+XX(0)),W(3),W(4)),('vm',2),('gap',2))
    p.U([(2,0)]); p.a(('vm',4))
    p.bar([W(1)]+XX(3),[0],name='b1'); p.a(('wread',1),*D(W(5)),('gap',gap),('dsr',2))
    p.U([(3,0),(2,1),(3,1)])
    p.bar([W(2),W(3)]+XX(1)+XX(0),[1],name='b2'); p.a(('wread',2),('wread',3),*D(W(6)))
    p.U([(1,0)]); p.a(('dsr',1)); p.U([(1,1),(0,0),(0,1),(2,2),(3,2),(1,2),(0,2)])
    p.bar([W(4),W(5)],[2,3],name='b3'); p.a(('wread',4),('wread',5),*D(W(7),W(8),*XX(4)))
    p.U([(i,g) for g in (3,4) for i in (2,3,1,0)])
    p.bar([W(6),W(7)],name='b4'); p.a(('wread',6),('wread',7),*D(*XX(5),*XX(6),*XX(7),*XX(8)),('gap',6))
    p.U([(i,g) for g in (5,6) for i in (2,3,1,0)])
    p.bar([W(8)]+XX(4),name='b5'); p.a(('wread',8))
    p.U([(2,7),(3,7),(1,7),(0,7),(0,8),(1,8),(2,8),(3,8)])
    p.a(('stamp','phB'))
    p.U([(4,g) for g in range(6)])
    p.bar(XX(5)+XX(6)+XX(7)+XX(8),name='bx')
    for i in range(4,9): p.U([(i,g) for g in range(9)])
    return {'init':init,'seq':p.seq}
def v8b(): return v8(0)
def v8c(): return v8(1,3)
def nohop(r): r['init']=[t for t in r['init'] if t[0]!='hop']; return r
def v8B():
    r=nohop(v8(0)); r['init'].append(('hop',)); return r
def v8C():
    r=nohop(v8(1)); i=r['init'].index(('addr',)); r['init'].insert(i+1,('hop',)); return r
def v8D():
    r=nohop(v8(1)); i=r['seq'].index(('vm',4)); r['seq'].insert(i+1,('hop',)); return r
def v8E():
    r=nohop(v8(1)); r['init'].insert(0,('hop',)); return r
def v8x():
    r=v8(); q=[];
    for t in r['seq']:
        q.append(t)
        if t[0]=='u' and t[2]==8 and t[1]>=4: q.append(('stamp','r%d'%t[1]))
    r['seq']=q
    r['init']=r['init'][:3]+[('stamp','i0')]+r['init'][3:4]+[('stamp','hop')]+r['init'][4:]
    return r
def v8t():
    r=v8(); r['init'].insert(3,('TP',4)); return r
def v8t0():
    r=v8(); r['init'].insert(0,('TP',4)); return r
def v8tx():
    r=v8(); r['init'].insert(3,('TX','x')); return r
def v8w():
    r=v8(); i=r['init']; r['init']=[i[2],i[0],i[1]]+i[3:]; return r
def v8r(): return addR(v8(),('b2','bx'))
def v9(nx=2,s6=1,x4=0):
    p=P()
    pre=XX(2)+XX(3)+(XX(1) if nx==3 else [])
    init=pre+[W(0),('hop',),('late',),W(1)]+(XX(1) if nx==2 else [])+[('addr',),W(2)]+XX(0)
    p.bar([W(0)]+pre,name='b0'); p.a(('wread',0),('dsall',),*D(W(3),W(4),*([W(5)] if s6 else [])),('vm',2),('gap',2))
    p.U([(2,0),(3,0)]+([(1,0)] if nx==3 else []))
    p.bar([W(1)]+(XX(1) if nx==2 else []),[0],name='b1'); p.a(('wread',1),*D(W(6) if s6 else W(5)),('gap',4),('dsr',2))
    p.U([(1,0),(2,1),(3,1),(1,1)] if nx==2 else [(2,1),(3,1),(1,1)])
    p.bar([W(2),W(3)]+XX(0),[1],name='b2'); p.a(('wread',2),('wread',3),*D(W(7) if s6 else W(6)))
    p.U([(0,0),(0,1)]); p.a(('dsr',1)); p.U([(2,2),(3,2),(1,2),(0,2),(2,3)])
    p.bar([W(4),W(5)],[2,3],name='b3'); p.a(('wread',4),('wread',5),*D(*([] if s6 else [W(7)]),W(8),*XX(4),*XX(5)))
    p.U([(3,3),(1,3),(0,3)]+[(i,4) for i in (2,3,1,0)]+[(2,5)])
    p.bar([W(6),W(7)],[5],name='b4'); p.a(('wread',6),('wread',7),*D(*XX(6),*XX(7),*XX(8)),('gap',6))
    p.U([(3,5),(1,5),(0,5)]+[(i,6) for i in (2,3,1,0)]+[(2,7)])
    p.bar([W(8)]+XX(4),name='b5'); p.a(('wread',8))
    p.U([(3,7),(1,7),(0,7),(0,8),(1,8),(2,8),(3,8)])
    p.a(('stamp','phB'))
    p.U([(4,g) for g in range(6)])
    p.bar(XX(5)+XX(6)+XX(7)+XX(8),name='bx')
    for i in range(4,9): p.U([(i,g) for g in range(9)])
    return {'init':init,'seq':p.seq}
def v9a(): return v9(2,0)
def v9b(): return v9(3,1)
def probeD():
    r=v8(); r['seq']=[t for t in r['seq'] if t[0]!='stamp']
    X=lambda i:('X',i)
    init=[('late',),('stamp','l')]
    for t in [X(2),X(9),X(3),W(0),W(1),X(10),W(2),X(1),X(8),X(0),X(7)]: init+=[t,wt(t)]
    r['init']=init+[('addr',),('hop',)]
    return r
def lean(k):
    r=v8(); full=[('X',3),('X',10),W(1),('X',1),('X',8),W(2),('X',0),('X',7)]
    order={0:[],1:[W(1)],2:[W(1),('X',3),('X',10)],3:[W(1),('X',3),('X',10),W(2)]}[k]
    rest=[t for t in full if t not in order]
    r['init']=XX(2)+[W(0),('hop',),('late',)]+order+[('addr',)]
    q=[]
    for t in r['seq']:
        if t==('dsall',): q+=[t]+D(*rest)+[('vm',sum(5 if x[0]=='W' else 1 for x in rest))]
        elif t[0]!='stamp' or t[1] in('b0','b1','b2','b3'): q.append(t)
    r['seq']=q; return r
def lean0(): return lean(0)
def lean1(): return lean(1)
def lean2(): return lean(2)
def lean3(): return lean(3)

def v10(gap=4,g3=4,xfirst=0,n4=2):
    p=P()
    init=XX(2)+[W(0),('hop',),('late',)]+XX(3)+[W(1)]+XX(1)+[('addr',)]+[W(2)]+XX(0)
    p.bar([W(0)]+XX(2),name='b0'); p.a(('wread',0),('dsall',),*D(W(3),W(4)),('vm',2),('gap',2))
    p.U([(2,0)]); p.a(('vm',4))
    p.bar([W(1)]+XX(3),[0],name='b1'); p.a(('wread',1),*D(W(5)),('gap',gap),('dsr',2))
    p.U([(3,0),(2,1),(3,1)])
    p.bar([W(2),W(3)]+XX(1)+XX(0),[1],name='b2'); p.a(('wread',2),('wread',3),*D(W(6)))
    p.U([(1,0)]); p.a(('dsr',1)); p.U([(1,1),(0,0),(0,1),(2,2),(3,2),(1,2),(0,2)])
    xs=XX(4)+XX(5)+XX(6)+XX(7)+XX(8)
    d=D(W(7),*xs,W(8)) if xfirst else D(W(7),W(8),*xs)
    p.bar([W(4),W(5)],[2,3],name='b3'); p.a(('wread',4),('wread',5),*d,('gap',g3))
    p.U([(i,g) for g in (3,4) for i in (2,3,1,0)])
    p.bar([W(6),W(7)],name='b4'); p.a(('wread',6),('wread',7))
    p.U([(i,g) for g in (5,6,7) for i in (2,3,1,0)])
    p.bar([W(8)]+xs,name='b5'); p.a(('wread',8))
    p.U([(4,g) for g in range(n4)])
    p.U([(0,8),(1,8),(2,8),(3,8)])
    p.a(('stamp','phB'))
    for i in range(4,9): p.U([(i,g) for g in range(9)])
    return {'init':init,'seq':p.seq}
def v10b(): return v10(xfirst=1)
def v10c(): return v10(g3=3,xfirst=1)

def v11(mode=0):
    r=v8(); q=r['seq']
    k=max(j for j,t in enumerate(q) if t[0]=='u' and t[1]==4)
    q=q[:k+1]; G=range(9)
    if mode==0:
        q+=[('u',5,g) for g in G]+[('u',6,g,(4,5)) for g in G]+[('u',7,g,(5,)) for g in G]
        q+=[('u',i,g,(6,)) for g in G for i in (6,7,8)]
    if mode==1:
        q+=[('u',5,g,(3,4)) for g in G]+[('u',6,g,(4,)) for g in G]
        q+=[('u',i,g,(5,)) for g in G for i in (5,6,7)]+[('u',i,g,(6,)) for g in G for i in (6,7,8)]
    if mode==2:
        q+=[('u',5,g) for g in G]+[('u',6,g) for g in G]+[('u',7,g,(5,)) for g in G]
        q+=[('u',i,g,(6,)) for g in G for i in (7,8)]
    r['seq']=q; return r
def v11b(): return v11(1)
def v11c(): return v11(2)

def v12(dsr4=2,g3=3,gx=5,tail=1,pre=1):
    p=P(); G=range(9)
    r=v8(); q=r['seq']
    k=[j for j,t in enumerate(q) if t==('stamp','b3')][0]
    p.seq=q[:k+1]
    xs=XX(4)+XX(5)+XX(6)+XX(7)+XX(8)
    u=lambda i,g,*rows: p.seq.append(('u',i,g,rows) if rows else ('u',i,g))
    p.a(('wread',4),('wread',5),*D(W(7),W(8),*xs),('gap',g3))
    for g in (3,4):
        for i in (2,3,1,0): u(i,g)
        if g==3: pass
    p.a(('gap',gx))
    u(2,5,0,1); u(1,5); u(0,5); u(3,5,1)
    if pre: u(3,5,2,3); u(2,5,2)
    p.bar([W(6),W(7),W(8)],name='b4'); p.a(('wread',6),('wread',7),('wread',8),('dsr',dsr4))
    if not pre: u(3,5,2,3); u(2,5,2)
    if pre: p.a(('dsn',6))
    for g in (6,7,8): u(0,g); u(1,g,0); u(2,g,0)
    p.a(('dsr',1),('stamp','r0'))
    for g in (6,7,8): u(3,g); u(2,g,1,2); u(1,g,1)
    p.bar(xs,name='bx')
    for g in G: u(4,g)
    if tail==1:
        for g in G: u(5,g,3,4)
        for g in G: u(6,g,4)
        for g in G: u(5,g,5); u(6,g,5); u(7,g,5)
    else:
        for g in G: u(5,g)
        for g in G: u(6,g,4,5)
        for g in G: u(7,g,5)
    for g in G: u(6,g,6); u(7,g,6); u(8,g,6)
    r['seq']=[t for t in p.seq if t[0]!='dsn']; return r
def v12b(): return v12(pre=0)
def v12c(): return v12(pre=0,tail=0)
def v12d(): return v12(pre=0,g3=4,gx=4)
def v12e(): return v12(pre=0,dsr4=3)

def v13(mode=0):
    r=v8(); q=r['seq']
    k=max(j for j,t in enumerate(q) if t[0]=='u' and t[1]==4)
    q=q[:k+1]; G=range(9); S=(6,(2,)); B=(6,(0,1))
    if mode==0:
        for g in G: q+=[('u',5,g),('u',8,g,(S,))]
        q+=[('u',6,g,(S,5,4)) for g in G]+[('u',7,g,(S,5)) for g in G]
        q+=[('u',i,g,(B,)) for g in G for i in (6,7,8)]
        r['split']=(6,)
    if mode==1:
        for g in G: q+=[('u',5,g),('u',8,g,(S,))]
        q+=[('u',6,g) for g in G]+[('u',7,g,(S,5)) for g in G]
        q+=[('u',i,g,(B,)) for g in G for i in (7,8)]
        r['split']=(6,)
    if mode==2:
        for g in G: q+=[('u',5,g),('u',8,g,(S,))]
        q+=[('u',6,g) for g in G]+[('u',7,g) for g in G]+[('u',8,g,(B,)) for g in G]
        r['split']=(6,)
    if mode==3:
        S5=(5,(2,)); B5=(5,(0,1))
        for g in G: q+=[('u',5,g),('u',8,g,(S,)),('u',7,g,(S,S5))]
        q+=[('u',6,g,(S,5,4)) for g in G]+[('u',7,g,(B5,)) for g in G]
        q+=[('u',i,g,(B,)) for g in G for i in (6,7,8)]
        r['split']=(5,6)
    r['seq']=q; return r
def v13b(): return v13(1)
def v13c(): return v13(2)
def v13d(): return v13(3)

def v14(mode=0):
    r=v8(); q=r['seq']
    k=max(j for j,t in enumerate(q) if t[0]=='u' and t[1]==4)
    q=q[:k+1]; G=range(9); S=lambda *a: tuple((x,(2,)) for x in a); B=lambda *a: tuple((x,(0,1)) for x in a)
    if mode<2:
        for g in G: q+=[('u',8,g,S(6)),('u',5,g,S(5,4,3)),('u',7,g,S(6,5)),('u',6,g,S(6,5,4))]
        q+=[('u',5,g,B(3,4,5)) for g in G]
        if mode==0: q+=[('u',6,g,B(4,5,6)) for g in G]+[('u',7,g,B(5,6)) for g in G]+[('u',8,g,B(6)) for g in G]
        else: q+=[('u',6,g,B(4,5)) for g in G]+[('u',7,g,B(5)) for g in G]+[('u',i,g,B(6)) for g in G for i in (6,7,8)]
        r['split']=(3,4,5,6)
    if mode==2:
        for g in G: q+=[('u',8,g,S(6)),('u',5,g),('u',7,g,S(6,5)),('u',6,g,S(6,5,4))]
        q+=[('u',6,g,B(4,5)) for g in G]+[('u',7,g,B(5)) for g in G]+[('u',i,g,B(6)) for g in G for i in (6,7,8)]
        r['split']=(4,5,6)
    if mode==3:
        for g in G: q+=[('u',8,g,S(6)),('u',5,g),('u',7,g,S(6,5)),('u',6,g,S(6,5,4))]
        q+=[('u',6,g,B(4,5,6)) for g in G]+[('u',7,g,B(5)) for g in G]+[('u',i,g,B(6)) for g in G for i in (7,8)]
        r['split']=(4,5,6)
    r['seq']=q; return r
def v14b(): return v14(1)
def v14c(): return v14(2)
def v14d(): return v14(3)
```

```python
import sys, json
XP = 3456
XROWS = 16
WBASE = XROWS*XP
KGS = 4640
WSLOT = 4*KGS
NSLOT = 5
LDS = WBASE + NSLOT*WSLOT

def gen(cfg):
    global WBASE, LDS
    s6 = cfg.get('slots6')
    if s6: WBASE = 14*XP; LDS = WBASE + 6*WSLOT
    def slot_of(g): return ((g+1) % 6 if g < 6 else g-5) if s6 else g % NSLOT
    stamps = cfg.get('stamps', False)
    L = []
    e = L.append
    vWA, vWS, vWA2, vWS2 = 1, 2, 3, 4
    vX = [5, 6, 7]
    vDW = [8, 9, 10, 11, 12]
    vDX = 13
    vOB, vOS = 14, 15
    vT = 16
    vF = 32
    NF = 4
    vAcc = 48
    vW0 = 132
    def wreg(idx):
        return ('a', 4*idx) if idx < 64 else ('v', vW0+4*(idx-64))
    def rr(kind, b, n): return f"{kind}[{b}:{b+n-1}]"
    def acc(r, t): return vAcc + 12*r + 4*t
    sX, sWt, sO = 4, 8, 12
    sRow = 16
    sWave = 32; sM0X = 33; sM0W = 34; sOut = 35; sTmp = 36; sG = 37; sOrow = 38
    sSt = 40
    nst = [0]; stn = []
    def stamp(name):
        if stamps:
            op = "s_memrealtime" if name.startswith('R') else "s_memtime"
            e(f"{op} s[{sSt+2*nst[0]}:{sSt+2*nst[0]+1}]"); nst[0] += 1; stn.append(name)
    rot = cfg.get('rot', 0)
    groups = [(q % 3, q // 3) for q in range(9)]
    vXg = [200+g for g in range(9)]; sWo = 84
    stamp('Rstart'); stamp('start')
    e("s_load_dwordx4 s[4:7], s[0:1], 0")
    e("s_load_dwordx2 s[12:13], s[0:1], 16")
    if stamps: e(f"s_load_dwordx2 s[96:97], s[0:1], {24 if stamps=='dbg' else 32}")
    e("s_cmp_ge_u32 s2, 224")
    e("s_cbranch_scc1 L_end")
    e("v_lshrrev_b32 v16, 6, v0")
    e("v_and_b32 v0, 63, v0")
    e("v_readfirstlane_b32 s32, v16")
    e("s_and_b32 s36, s2, 7"); e("s_mul_i32 s36, s36, 28"); e("s_lshr_b32 s37, s2, 3"); e("s_add_u32 s36, s36, s37")
    e("s_mul_i32 s37, s36, 4682"); e("s_lshr_b32 s37, s37, 16")
    e("s_mul_i32 s38, s37, 14"); e("s_sub_u32 s36, s36, s38")
    e("s_lshl_b32 s36, s36, 4")
    e("s_mul_i32 s33, s32, 1536")
    e("v_lshlrev_b32 v8, 4, v0")
    e("v_add_u32 v8, s33, v8")
    e("v_lshrrev_b32 v16, 5, v0")
    e("v_mul_u32_u24 v16, 53760, v16")
    e("v_add_u32 v9, v8, v16")
    e("v_add_u32 v10, 53760, v8")
    e(f"v_add_u32 v11, {2*53760}, v8")
    e(f"v_add_u32 v12, {2*53760+4096}, v8")
    e(f"s_mul_i32 s34, s32, {KGS}"); e(f"s_add_u32 s34, s34, {WBASE}")
    e("s_lshl_b32 s33, s32, 6")
    e("v_add_u32 v16, s33, v0")
    e("v_mul_u32_u24 v17, 171, v16")
    e("v_lshrrev_b32 v17, 11, v17")
    e("v_mul_u32_u24 v18, 12, v17")
    e("v_sub_u32 v16, v16, v18")
    e("v_lshrrev_b32 v18, 1, v17")
    e("v_and_b32 v18, 2, v18")
    e("v_xor_b32 v16, v16, v18")
    e("v_add_u32 v17, s36, v17")
    e("v_subrev_u32 v17, 2, v17")
    e("v_add_u32 v18, 224, v17")
    e("v_min_u32 v17, v17, v18")
    e("v_mul_u32_u24 v17, 192, v17")
    e("v_lshl_add_u32 v13, v16, 4, v17")
    e("s_lshl_b32 s33, s32, 10")
    e("s_mul_i32 s18, s38, 43008"); e(f"s_add_u32 s25, s18, {7*43008}")
    if rot:
        e("s_lshr_b32 s39, s2, 3"); e("s_mul_i32 s3, s39, 21846"); e("s_lshr_b32 s3, s3, 16")
        e("s_mul_i32 s93, s3, 3"); e("s_sub_u32 s93, s39, s93")
        e("s_mul_i32 s94, s3, 21846"); e("s_lshr_b32 s94, s94, 16"); e("s_mul_i32 s94, s94, 3"); e("s_sub_u32 s94, s3, s94")
    else:
        e("s_mov_b32 s93, 0"); e("s_mov_b32 s94, 0")
    e("s_mul_i32 s76, s93, 18432"); e("s_mul_i32 s80, s94, 6144"); e(f"s_add_u32 s{sWo}, s76, s80")
    def late():
        for j in (1, 2):
            e(f"s_add_u32 s{76+j}, s{75+j}, 18432"); e(f"s_cmp_eq_u32 s{76+j}, 55296"); e(f"s_cselect_b32 s{76+j}, 0, s{76+j}")
            e(f"s_add_u32 s{80+j}, s{79+j}, 6144"); e(f"s_cmp_eq_u32 s{80+j}, 18432"); e(f"s_cselect_b32 s{80+j}, 0, s{80+j}")
        for g in range(1, 9): e(f"s_add_u32 s{sWo+g}, s{76+g//3}, s{80+g%3}")
        e("s_add_u32 s39, s38, 222"); e("s_sub_u32 s16, s38, 2"); e("s_cmp_eq_u32 s38, 0")
        e("s_cselect_b32 s16, s39, s16"); e("s_mul_i32 s16, s16, 43008"); e("s_add_u32 s17, s16, 43008")
        for i in range(3, 16):
            if i != 9: e(f"s_add_u32 s{16+i}, s18, {(i-2)*43008}")
    e("s_cmp_eq_u32 s32, 3"); e("s_cselect_b32 s98, 0xffffff, -1"); e("s_cselect_b32 s99, 0, -1")
    e("s_waitcnt lgkmcnt(0)")
    stamp('karg')
    e("s_mov_b32 s8, s6"); e("s_mov_b32 s9, s7"); e("s_mov_b32 s10, 165888"); e("s_mov_b32 s11, 0x20000")
    e("s_mov_b32 s6, 9633792"); e("s_mov_b32 s7, 0x20000")
    e("s_mov_b32 s14, 9633792"); e("s_mov_b32 s15, 0x20000")
    vm = [0]
    ds = [0]
    vmdone = {}
    dsdone = {}
    def dmaW(g):
        c, kw = groups[g]; slot = slot_of(g)
        so = kw*18432 + c*6144
        out = []
        sG = sWo + g
        out.append(([f"s_add_u32 m0, s{sM0W}, {slot*WSLOT}", "s_nop 0",
                     f"buffer_load_dwordx4 v8, s[8:11], s{sG} offen lds"], 'vm', None))
        for m in (1, 2, 3):
            out.append(([f"buffer_load_dwordx4 v{8+m}, s[8:11], s{sG} offen offset:{1024*m} lds"], 'vm', None))
        out.append(([f"s_add_u32 m0, s{sM0W}, {slot*WSLOT+4096}", "s_mov_b32 exec_hi, 0",
                     f"buffer_load_dwordx4 v12, s[8:11], s{sG} offen lds", "s_mov_b32 exec_hi, -1"], 'vm', ('W', g)))
        return out
    def dmaX(i):
        return [([f"s_add_u32 m0, s{sM0X}, {i*XP}", "s_mov_b64 exec, s[98:99]",
                  f"buffer_load_dwordx4 v13, s[4:7], s{sRow+i} offen lds", "s_mov_b64 exec, -1"], 'vm', ('X', i))]
    def wread(g):
        slot = slot_of(g); out = []
        for kh in (2, 1, 0):
            for t in range(3):
                k, b = wreg(g*9 + kh*3 + t)
                for half in range(2):
                    off = slot*WSLOT + kh*1536 + half*768
                    va = vWA if t < 2 else vWS
                    if t == 1: off += 32
                    if slot >= 3: off -= 3*WSLOT; va += 2
                    out.append(([f"ds_read_b64_tr_b16 {rr(k, b+2*half, 2)}, v{va} offset:{off}"], 'ds', ('w', g, kh, t) if half else None))
        return out
    def put(item):
        lines, kind, tag = item
        for l in lines: e(l)
        if kind == 'vm':
            vm[0] += 1
            if tag: vmdone[tag] = vm[0]
        elif kind == 'ds':
            ds[0] += 1
            if tag: dsdone[tag] = ds[0]
    dswaited = [0]
    def waitds(tag):
        n = dsdone[tag]
        if n > dswaited[0]:
            e(f"s_waitcnt lgkmcnt({min(15, ds[0]-n)})"); dswaited[0] = max(n, ds[0]-15)
    hopinit = [False]
    def hop():
        e("s_mov_b64 vcc, -1")
        if not hopinit[0]: e("v_mov_b32 v14, 0"); e("v_mov_b32 v15, 0")
        e("s_cmp_eq_u32 s32, 3"); e("s_cbranch_scc1 L_pad0"); e("s_cmp_eq_u32 s32, 2"); e("s_cbranch_scc1 L_pad1")
        e("L_main:"); e("s_mov_b64 vcc, 0")
    plan = cfg['plan']
    first = True
    for tok in plan['init']:
        if tok[0] == 'W':
            for it in dmaW(tok[1]): put(it)
        elif tok[0] == 'X':
            for it in dmaX(tok[1]): put(it)
        elif tok[0] == 'stamp': stamp(tok[1])
        elif tok[0] == 'PF':
            e("s_lshr_b32 s39, s2, 3"); e("s_lshl_b32 s39, s39, 2"); e("s_add_u32 s39, s39, s32")
            e("s_mul_i32 s3, s39, 1821"); e("s_lshr_b32 s3, s3, 16"); e("s_mul_i32 s3, s3, 36"); e("s_sub_u32 s39, s39, s3")
            e("s_mul_i32 s39, s39, 4608")
            e("v_mul_u32_u24 v20, 72, v0"); e("v_and_b32 v20, 0xfffffffc, v20")
            put(([f"buffer_load_dword v21, v20, s[8:11], s39 offen"], 'vm', None))
        elif tok[0] == 'wait':
            e(f"s_waitcnt vmcnt({vm[0]-vmdone[tuple(tok[1])]})"); stamp(tok[2])
        elif tok[0] == 'addr':
            hopinit[0] = True
            e("v_lshrrev_b32 v16, 4, v0")
            e("v_and_b32 v17, 15, v0")
            e("s_and_b32 s39, s32, 1")
            e("s_lshr_b32 s3, s32, 1")
            e(f"v_mul_u32_u24 v1, {KGS}, v16")
            e("v_bfe_u32 v18, v0, 2, 2"); e("v_mul_u32_u24 v18, 192, v18"); e("v_add_u32 v1, v1, v18")
            e("v_and_b32 v18, 3, v0"); e("v_lshl_add_u32 v1, v18, 3, v1")
            e(f"v_add_u32 v1, {WBASE}, v1")
            e("s_lshl_b32 s35, s39, 5"); e("s_add_u32 s35, s35, 64")
            e("v_add_u32 v2, s35, v1")
            e("s_lshl_b32 s39, s39, 7")
            e("v_add_u32 v1, s39, v1")
            e(f"v_add_u32 v3, {3*WSLOT}, v1"); e(f"v_add_u32 v4, {3*WSLOT}, v2")
            e("v_mul_u32_u24 v14, 192, v17")
            e("v_lshl_add_u32 v15, v16, 3, v14"); e("v_add_u32 v15, s35, v15")
            e("v_and_b32 v18, 1, v16"); e("v_lshl_add_u32 v14, v18, 5, v14")
            e("v_lshrrev_b32 v18, 1, v16"); e("v_lshl_add_u32 v14, v18, 4, v14"); e("v_add_u32 v14, s39, v14")
            e(f"s_mul_i32 s39, s3, {7*XP}")
            e("s_sub_u32 s93, 2, s93")
            for j in range(3):
                e("v_add_u32 v18, s93, v17")
                if j < 2: e("s_sub_u32 s93, s93, 1"); e("s_cselect_b32 s93, 2, s93")
                e("v_lshrrev_b32 v19, 1, v18"); e("v_and_b32 v19, 2, v19"); e("v_xor_b32 v19, v19, v16")
                e("v_mul_u32_u24 v18, 192, v18"); e(f"v_lshl_add_u32 v{vX[j]}, v19, 4, v18")
            for j in range(3):
                e(f"s_lshr_b32 s{80+j}, s{80+j}, 11"); e(f"s_mul_i32 s{80+j}, s{80+j}, 21"); e(f"s_add_u32 s{80+j}, s{80+j}, 63");
                e(f"s_and_b32 s{80+j}, s{80+j}, 0xc0"); e(f"s_add_u32 s{80+j}, s{80+j}, s39")
            for g in range(9): e(f"v_add_u32 v{vXg[g]}, s{80+g%3}, v{vX[g//3]}")
            e("s_mul_i32 s3, s3, 7"); e("s_add_u32 s3, s3, s38"); e("s_mul_i32 s3, s3, 224"); e("s_add_u32 s3, s3, s36")
            e("s_mul_i32 s35, s3, 192")
        elif tok[0] == 'TX':
            e("v_and_b32 v20, 15, v0"); e("v_add_u32 v20, s38, v20"); e("s_mul_i32 s3, s36, 192")
            if 'o' in tok[1]:
                e("v_mul_u32_u24 v22, 43008, v20")
                put(([f"buffer_load_dword v23, v22, s[12:15], s3 offen"], 'vm', None))
            if 'x' in tok[1]:
                e("v_subrev_u32 v20, 2, v20"); e("v_add_u32 v21, 224, v20"); e("v_min_u32 v20, v20, v21")
                e("v_mul_u32_u24 v20, 43008, v20")
                put(([f"buffer_load_dword v21, v20, s[4:7], s3 offen"], 'vm', None))
        elif tok[0] == 'hop':
            hop()
        elif tok[0] == 'TP':
            e("s_lshr_b32 s39, s2, 3"); e("s_lshl_b32 s39, s39, 2"); e("s_add_u32 s39, s39, s32")
            e("s_mul_i32 s3, s39, 2185"); e("s_lshr_b32 s3, s3, 16"); e("s_mul_i32 s3, s3, 30"); e("s_sub_u32 s39, s39, s3")
            e("s_and_b32 s3, s2, 7"); e("s_mul_i32 s3, s3, 28"); e("s_add_u32 s39, s39, s3"); e("s_add_u32 s3, s39, 222"); e("s_sub_u32 s39, s39, 2")
            e("s_cselect_b32 s39, s3, s39"); e("s_mul_i32 s39, s39, 43008"); e("s_mov_b64 exec, 1")
            put(([f"buffer_load_dword v21, v13, s[{tok[1]}:{tok[1]+3}], s39 offen"], 'vm', None)); e("s_mov_b64 exec, -1")
        elif tok[0] == 'late': late()
        elif tok[0] == 'addr2':
            for g in tok[1]:
                e(f"s_cmp_ge_u32 s{sWo+g}, 18432"); e("s_cselect_b64 vcc, -1, 0"); e(f"s_cselect_b32 s3, 18432, 0")
                e(f"v_cndmask_b32 v{vXg[g]}, v{vX[0]}, v{vX[1]}, vcc")
                e(f"s_cmp_ge_u32 s{sWo+g}, 36864"); e("s_cselect_b64 vcc, -1, 0"); e(f"s_cselect_b32 s3, 36864, s3")
                e(f"v_cndmask_b32 v{vXg[g]}, v{vXg[g]}, v{vX[2]}, vcc")
                e(f"s_sub_u32 s3, s{sWo+g}, s3"); e("s_lshr_b32 s3, s3, 12"); e("s_add_u32 s3, s3, 1"); e("s_lshr_b32 s3, s3, 1"); e("s_lshl_b32 s3, s3, 6")
                e(f"v_add_u32 v{vXg[g]}, s3, v{vXg[g]}")
    stamp('issued')
    paths = cfg.get('paths', 1)
    def main(w):
        seq = plan['seq']
        units = [t for t in seq if t[0] == 'u']
        def utiles(t, r):
            if len(t) < 4: return (0, 1, 2)
            for x in t[3]:
                if x == r: return (0, 1, 2)
                if isinstance(x, tuple) and x[0] == r: return x[1]
            return ()
        cov = sorted((t[1], t[2], r, tt) for t in units for r in range(max(0, t[1]-2), min(6, t[1])+1) for tt in utiles(t, r))
        assert cov == sorted((i, g, r, tt) for i in range(9) for g in range(9) for r in range(max(0, i-2), min(6, i)+1) for tt in range(3))
        split = plan.get('split', ()); remP = {(r, p): (27 if p == 's' else 54) for r in range(7) for p in 'sb'}
        remaining = {r: 81 for r in range(7)}
        started = set()
        side = []
        uidx = [0]
        fr_issued = [0]
        barpos = [0]; ubar = []; nb = 0
        for t in seq:
            if t[0] == 'bar': nb += 1
            if t[0] == 'u': ubar.append(nb)
        xavail = {}; nb = 0
        for t in seq:
            if t[0] == 'bar':
                nb += 1
                for tg in t[1]:
                    if tg[0] == 'X': xavail[tg[1]] = nb
        def xbar(i): return max(xavail[i], xavail[i+7])
        curbar = [0]
        PF = cfg.get('pf', 2)
        def frag_item(n):
            _, i, g = units[n][:3]; c, kw = groups[g]
            return ([f"ds_read_b128 v[{vF+4*(n%NF)}:{vF+4*(n%NF)+3}], v{vXg[g]} offset:{i*XP}"], 'ds', ('f', n))
        def try_frags():
            out = []
            while fr_issued[0] < len(units) and fr_issued[0] <= uidx[0]+PF and xbar(units[fr_issued[0]][1]) <= curbar[0]:
                out.append(frag_item(fr_issued[0])); fr_issued[0] += 1
            return out
        pend_store = []
        nm = [0]
        tset = [0]
        def store_items(r):
            if isinstance(r, tuple):
                its = store_items(r[0]); sa = its[3][0][0]
                if r[1] == 's': return [its[2], ([sa], 'v', None), its[5]]
                return [its[0], its[1], its[3], its[4], its[6]]
            T = vT + 8*(tset[0] & 1); tset[0] += 1
            a = lambda t: acc(r, t)
            cv = lambda d, s: f"v_cvt_pk_bf16_f32 v{d}, v{s}, v{s+1}"
            nt = cfg.get('stflag', ''); nt2 = cfg.get('stflag2', nt)
            if str(r) in str(cfg.get('plain', '')): nt = nt2 = cfg.get('lastflag', '')
            nt = nt.replace('none', '').replace('+', ' '); nt2 = nt2.replace('none', '').replace('+', ' ')
            return [([cv(T, a(0)), cv(T+1, a(0)+2)], 'v', None), ([cv(T+2, a(1)), cv(T+3, a(1)+2)], 'v', None),
                    ([cv(T+4, a(2)), cv(T+5, a(2)+2)], 'v', None),
                    ([f"s_add_u32 s{sOrow}, s{sOut}, {r*43008}", f"v_permlane16_swap_b32 v{T}, v{T+2}"], 'v', None),
                    ([f"v_permlane16_swap_b32 v{T+1}, v{T+3}"], 'v', None),
                    ([f"buffer_store_dwordx2 v[{T+4}:{T+5}], v{vOS}, s[12:15], s{sOrow} offen {nt2}"], 'vm', None),
                    ([f"buffer_store_dwordx4 v[{T}:{T+3}], v{vOB}, s[12:15], s{sOrow} offen {nt}"], 'vm', None)]
        dq = []; vq = []; sq = []
        def flush(q, pred):
            while q and pred(): put(q.pop(0))
        lastvm = [-99]; ph = w if paths > 1 else 0
        vmgap = [cfg.get('vmgap', 4)]; stag = [cfg.get('stag', 0)]; nm_bar = [0]; dsr = [cfg.get('dsrate', 2)]
        for t in seq:
            if t[0] == 'stamp': stamp(t[1])
            elif t[0] == 'gap': vmgap[0] = t[1]
            elif t[0] == 'stag': stag[0] = t[1]
            elif t[0] == 'hop': hop()
            elif t[0] == 'dsr': dsr[0] = t[1]
            elif t[0] == 'vm':
                for _ in range(t[1]):
                    if vq: put(vq.pop(0))
                lastvm[0] = nm[0]
            elif t[0] == 'dsall': flush(dq, lambda: True)
            elif t[0] == 'bar':
                for g in t[2] if len(t) > 2 else []:
                    flush(dq, lambda: ('w', g, 0, 2) not in dsdone)
                    waitds(('w', g, 0, 2))
                for tg in t[1]: flush(vq, lambda: tuple(tg) not in vmdone)
                need = max(vmdone[tuple(tg)] for tg in t[1]) if t[1] else 0
                if need: e(f"s_waitcnt vmcnt({vm[0]-need})")
                e("s_barrier"); curbar[0] += 1; nm_bar[0] = nm[0]
                for it in try_frags(): put(it)
            elif t[0] == 'wread':
                dq.extend(wread(t[1]))
            elif t[0] == 'dma':
                vq.extend(dmaW(t[1][1]) if t[1][0] == 'W' else dmaX(t[1][1]))
            elif t[0] == 'u':
                n = uidx[0]; _, i, g = t[:3]
                assert fr_issued[0] > n, (t, "frag not issued")
                for kh in (2, 1, 0):
                    r = i - 2 + kh
                    if not (0 <= r <= 6): continue
                    for tt in utiles(t, r):
                        tag = ('w', g, kh, tt)
                        flush(dq, lambda: tag not in dsdone)
                        waitds(tag); waitds(('f', n))
                        k, b = wreg(g*9 + kh*3 + tt)
                        A = acc(r, tt)
                        cin = f"v[{A}:{A+3}]" if (r, tt) in started else "0"
                        started.add((r, tt))
                        fo = f"v[{vF+4*(n%NF)}:{vF+4*(n%NF)+3}]"
                        e(f"v_mfma_f32_16x16x32_bf16 v[{A}:{A+3}], " + (f"{fo}, {rr(k, b, 4)}" if cfg.get('swap') else f"{rr(k, b, 4)}, {fo}") + f", {cin}")
                        nm[0] += 1
                        if pend_store and not sq and nm[0] - pend_store[0][1] >= 9:
                            sq.extend(store_items(pend_store.pop(0)[0]))
                        if vq and nm[0] - lastvm[0] >= vmgap[0] and (not stag[0] or (nm[0] - nm_bar[0]) % 4 == ph):
                            put(vq.pop(0)); lastvm[0] = nm[0]
                        elif dq:
                            for _ in range(dsr[0]):
                                if dq: put(dq.pop(0))
                        elif sq:
                            if sq[0][1] != 'vm' or (nm[0] - lastvm[0] >= cfg.get('stgap', 2) and (not stag[0] or nm[0] % 4 == ph)):
                                if sq[0][1] == 'vm': lastvm[0] = nm[0]
                                put(sq.pop(0))
                    if not utiles(t, r): continue
                    remaining[r] -= len(utiles(t, r))
                    if r in split:
                        for p, k2 in (('s', [x for x in utiles(t, r) if x == 2]), ('b', [x for x in utiles(t, r) if x < 2])):
                            remP[r, p] -= len(k2)
                            if k2 and remP[r, p] == 0: pend_store.append(((r, p), nm[0]))
                    elif remaining[r] == 0 and str(r) not in str(cfg.get('skiprows', '')): pend_store.append((r, nm[0]))
                uidx[0] += 1
                for it in try_frags(): put(it)
        stamp('mfma_done')
        assert not vq and not dq
        if sq: e('s_nop 1')
        while sq: put(sq.pop(0))
        if pend_store: e("s_nop 7")
        for r, _ in pend_store:
            its = store_items(r)
            for j, it in enumerate(its):
                if 'permlane' in it[0][-1] and 'cvt' in its[j-1][0][-1]: e("s_nop 1")
                put(it)

    snap = (vm[0], ds[0], dict(vmdone), dict(dsdone), dswaited[0], nst[0], list(stn))
    if paths > 1:
        for w in range(1, paths): e(f"s_cmp_eq_u32 s32, {w}"); e(f"s_cbranch_scc1 L_w{w}")
    for w in range(paths):
        vm[0], ds[0] = snap[0], snap[1]; vmdone.clear(); vmdone.update(snap[2]); dsdone.clear(); dsdone.update(snap[3])
        dswaited[0] = snap[4]; nst[0] = snap[5]; stn[:] = snap[6]
        if w: e(".p2align 6"); e(f"L_w{w}:")
        main(w)
        if w < paths-1: e("s_branch L_fin" if stamps else "s_endpgm")
    e("L_fin:")
    if stamps:
        stamp('stores_issued')
        e("s_waitcnt vmcnt(0)")
        stamp('end'); stamp('Rend')
        e("s_getreg_b32 s39, hwreg(HW_REG_XCC_ID)")
        e("s_waitcnt lgkmcnt(0)")
        e("s_mov_b32 s8, s96"); e("s_mov_b32 s9, s97"); e("s_mov_b32 s10, 0x100000")
        if stamps == 'dbg':
            e("s_cmp_lg_u32 s32, 0"); e("s_cbranch_scc1 L_end")
            e("s_mov_b32 s10, 256"); e("v_mov_b32 v1, 0"); e("s_mov_b64 exec, 1")
            e(f"s_not_b32 s3, s{sSt}"); e("v_mov_b32 v2, s3"); e("buffer_atomic_umax v2, v1, s[8:11], 0 offen")
            e(f"v_mov_b32 v3, s{sSt+2*(nst[0]-1)}"); e("buffer_atomic_umax v3, v1, s[8:11], 0 offen offset:4")
            e(f"v_mov_b32 v4, s{sSt}"); e("buffer_atomic_umax v4, v1, s[8:11], 0 offen offset:8")
            for j in range(2, nst[0]-1):
                if j+1 > 15: break
                e(f"s_sub_u32 s3, s{sSt+2*j}, s{sSt+2}"); e(f"v_mov_b32 v{5+j}, s3")
                e(f"buffer_atomic_add v{5+j}, v1, s[8:11], 0 offen offset:{4*(j+1)}")
            e("s_endpgm")
        e("s_lshl_b32 s3, s2, 2"); e("s_add_u32 s3, s3, s32"); e("s_lshl_b32 s3, s3, 8")
        e("v_mov_b32 v1, 0"); e("v_mov_b32 v2, s39")
        e("buffer_store_dword v2, v1, s[8:11], s3 offen offset:252")
        for j in range(nst[0]):
            e(f"v_mov_b32 v2, s{sSt+2*j}"); e(f"v_mov_b32 v3, s{sSt+2*j+1}")
            e(f"buffer_store_dwordx2 v[2:3], v1, s[8:11], s3 offen offset:{8*j}")
            e("s_nop 1")
    e("L_end:")
    e("s_endpgm")
    hdr = open('standalone__fft_conv__vision.s.ref').read().split('\n')
    out = []
    for l in hdr:
        if l.startswith('; @launch'): out.append(f"; @launch grid=(224,1,1) block=(256,1,1) lds={LDS}"); continue
        out.append(l)
        if l.startswith('standalone__fft_conv__vision_kernel:'): break
    if cfg.get('align12'): out = [l.replace('.p2align 8', '.p2align 12') for l in out]
    if any(t[0] == 'hop' for t in plan['init'] + plan['seq']):
        assert cfg.get('align12') and paths == 1
        import subprocess, re
        L = list(L)
        def addrs():
            open('_p.s', 'w').write('.amdgcn_target "amdgcn-amd-amdhsa--gfx950"\n.text\n' + '\n'.join(L) + '\n' + ''.join(f'L_pad{k}:\n' for k in range(8) if f'L_pad{k}:' not in L))
            subprocess.check_call('clang -x assembler -target amdgcn-amd-amdhsa -mcpu=gfx950 -c _p.s -o _p.o', shell=True)
            d = subprocess.check_output('llvm-objdump -d _p.o', shell=True).decode()
            return [int(m.group(1), 16) for m in re.finditer(r'// ([0-9A-F]{12}):', d)]
        k = 0; step = cfg.get('hopstep', 4096)
        while True:
            A = addrs(); idx = [i for i, l in enumerate(L) if not l.endswith(':')]; A = [a + 0x300 for a in A]
            assert len(A) == len(idx)
            nxt = [i for a, i in zip(A, idx) if a >= (k+1)*step]
            last = A[-1] < (k+2)*step + 64
            if not nxt: break
            L[nxt[0]:nxt[0]] = [f"L_pad{k}:", f"s_cbranch_vccnz L_main"]
            k += 1
            if last: break
        assert k == 2, k
    out += ["    "+l if not l.endswith(':') else l for l in L]
    out += """.section .rodata,"a"
.p2align 6
.amdhsa_kernel standalone__fft_conv__vision_kernel
  .amdhsa_next_free_vgpr 512
  .amdhsa_next_free_sgpr 102
  .amdhsa_accum_offset 256
  .amdhsa_group_segment_fixed_size 0
  .amdhsa_kernarg_size 40
  .amdhsa_user_sgpr_count 2
  .amdhsa_user_sgpr_kernarg_segment_ptr 1
  .amdhsa_system_sgpr_workgroup_id_x 1
.end_amdhsa_kernel""".split('\n')
    return '\n'.join(out)+'\n', stn

def plan_v1():
    init = [('W',0),('X',0),('X',7),('X',1),('X',8),('addr',),('X',2),('X',9),('X',3),('X',10),('W',1),('X',4),('X',11),('W',2),
            ('X',5),('X',12),('W',3),('X',6),('X',13),('W',4),('X',14),('X',15)]
    seq = []
    done = set()
    def U(lst):
        for i, g in lst:
            if (i, g) not in done: done.add((i, g)); seq.append(('u', i, g))
    seq += [('bar', [('W',0),('X',0),('X',7),('X',1),('X',8),('X',2),('X',9),('X',3),('X',10)]), ('stamp','b0'), ('wread',0)]
    U([(0,0),(1,0),(2,0)])
    seq += [('bar', [('W',1),('X',4),('X',11)], [0]), ('stamp','b1'), ('wread',1), ('dma',('W',5))]
    U([(3,0),(4,0),(0,1),(1,1),(2,1)])
    seq += [('bar', [('W',2),('X',5),('X',12)], [1]), ('stamp','b2'), ('wread',2), ('dma',('W',6))]
    U([(3,1),(4,1),(0,2),(1,2),(2,2)])
    seq += [('bar', [('W',3),('X',6),('X',13)], [2]), ('stamp','b3'), ('wread',3), ('dma',('W',7))]
    U([(3,2),(4,2),(0,3),(1,3),(2,3)])
    seq += [('bar', [('W',4),('X',14),('X',15)], [3]), ('stamp','b4'), ('wread',4), ('dma',('W',8))]
    U([(3,3),(4,3),(0,4),(1,4),(2,4)])
    for g in range(5, 9):
        seq += [('bar', [('W',g)]), ('stamp',f'b{g}'), ('wread',g)]
        U([(3,g-1),(4,g-1),(0,g),(1,g),(2,g)])
    U([(3,8),(4,8)])
    seq += [('stamp','phB')]
    for i in range(5, 9): U([(i, g) for g in range(9)])
    return {'init': init, 'seq': seq}

if __name__ == '__main__':
    cfg = {'plan': plan_v1()}
    for a in sys.argv[2:]:
        k, v = a.split('='); cfg[k] = json.loads(v) if v and v[0] in '0123456789[tf' else v
    if 'planf' in cfg:
        import plans; cfg['plan'] = getattr(plans, cfg['planf'])()
    s, stn = gen(cfg)
    open(sys.argv[1], 'w').write(s)
    print(stn)
```

```python
class P:
    def __init__(s): s.seq=[]; s.done=set()
    def U(s,lst):
        for i,g in lst:
            if (i,g) not in s.done: s.done.add((i,g)); s.seq.append(('u',i,g))
    def bar(s,tags,war=[],name=None):
        s.seq.append(('bar',tags,war))
        if name: s.seq.append(('stamp',name))
    def a(s,*t): s.seq += list(t)
W=lambda g:('W',g)
def XX(i): return [('X',i),('X',i+7)] if i not in (7,8) else [('X',i+7)]
def D(*toks): return [('dma',t) for t in toks]

def probe():
    r=v2()
    init=[W(0),('stamp','i0')]+XX(0)+XX(1)+[('addr',)]+XX(2)+XX(3)+XX(4)+XX(5)+[W(1),('stamp','i1'),
      ('wait',W(0),'aW0'),('wait',('X',9),'aX2'),('wait',('X',12),'aX5'),('wait',W(1),'aW1')]
    r['init']=init
    r['seq']=[t for t in r['seq'] if t[0]!='stamp' or t[1] in('b2','b4','b6','b8','phB')]
    return r

def v2():
    p=P()
    init=[W(0)]+XX(0)+XX(1)+[('addr',)]+XX(2)+XX(3)+XX(4)+XX(5)+[W(1)]
    p.bar([W(0)]+XX(0)+XX(1)+XX(2),name='b0'); p.a(('wread',0),*D(W(2)))
    p.U([(0,0),(1,0),(2,0)])
    p.bar(XX(3)+XX(4)+XX(5),name='b0x'); p.a(*D(W(3)))
    p.U([(3,0),(4,0),(5,0)])
    p.bar([W(1)],[0],name='b1'); p.a(('wread',1),*D(W(4),W(5)))
    p.U([(i,1) for i in range(6)])
    p.bar([W(2)],[1],name='b2'); p.a(('wread',2),*D(W(6)))
    p.U([(i,2) for i in range(5)])
    p.bar([W(3)],[2],name='b3'); p.a(('wread',3),*D(W(7)))
    p.U([(5,2)]+[(i,3) for i in range(4)])
    p.bar([W(4)],[3],name='b4'); p.a(('wread',4),*D(W(8),*XX(6),*XX(7),*XX(8)))
    p.U([(4,3)]+[(i,4) for i in range(4)])
    for g in range(5,9):
        p.bar([W(g)],name=f'b{g}'); p.a(('wread',g))
        p.U([(4,g-1)]+[(i,g) for i in range(4)])
    p.bar(XX(6)+XX(7)+XX(8))
    p.U([(4,8)])
    p.a(('stamp','phB'))
    for i in range(5,9): p.U([(i,g) for g in range(9)])
    return {'init':init,'seq':p.seq}
import gen
def v1few():
    r=gen.plan_v1()
    r['seq']=[t for t in r['seq'] if t[0]!='stamp' or t[1] in('b0','b2','b4','b6','b8','phB')]
    return r
def _probe(init):
    r=gen.plan_v1()
    r['init']=init
    r['seq']=[t for t in r['seq'] if t[0]!='stamp']
    return r
def wt(tok): return ('wait',tok,'a%s%d'%tok)
def probeA():
    xs=[2,3,1,0,4,5,6,7,8]
    init=[W(0),('addr',),W(1),W(2),W(3),W(4),('stamp','iW')]
    for i in xs: init+=XX(i)
    init+=[('stamp','iX')]+[wt(W(g)) for g in range(5)]+[wt(XX(i)[-1]) for i in xs]
    return _probe(init)
def probeB():
    xs=[2,3,1,0,4,5,6,7,8]
    init=[]
    for i in xs: init+=XX(i)
    init+=[('stamp','iX'),W(0),('addr',),W(1),W(2),W(3),W(4),('stamp','iW')]
    init+=[wt(XX(i)[-1]) for i in xs]+[wt(W(g)) for g in range(5)]
    return _probe(init)
def probeC():
    init=[W(0),*XX(2),('stamp','i0'),wt(W(0)),wt(('X',9)),W(1),*XX(3),('stamp','i1'),wt(W(1)),wt(('X',10)),
          W(2),('stamp','i2'),wt(W(2)),*XX(1),('stamp','i3'),wt(('X',8)),W(3),W(4),('stamp','i4'),wt(W(3)),wt(W(4)),('addr',)]
    for i in [0,4,5,6,7,8]: init+=XX(i)
    return _probe(init)
def v3(pf=True):
    p=P()
    init=([('PF',)] if pf else [])+[W(0)]+XX(2)+[W(1)]+XX(3)+[('addr',),W(2)]
    p.bar([W(0)]+XX(2),name='b0'); p.a(('wread',0),*D(*XX(1),W(3)))
    p.U([(2,0)])
    p.bar([W(1)],name='b1'); p.a(('wread',1))
    p.U([(2,1)])
    p.bar(XX(3)+[W(2)],[0],name='b2'); p.a(('wread',2),*D(*XX(0),W(4),W(5)))
    p.U([(3,0),(3,1),(2,2),(3,2)])
    p.bar(XX(1)+[W(3)],[1],name='b3'); p.a(('wread',3),*D(W(6)))
    p.U([(1,0),(1,1),(1,2),(2,3),(3,3)])
    p.bar(XX(0)+[W(4)],[2],name='b4'); p.a(('wread',4),*D(W(7)))
    p.U([(1,3),(0,0),(0,1),(0,2),(0,3),(2,4),(3,4)])
    p.bar([W(5)],[3],name='b5'); p.a(('wread',5),*D(W(8),*XX(4)))
    p.U([(1,4),(0,4),(2,5),(3,5)])
    p.bar([W(6)],name='b6'); p.a(('wread',6),*D(*XX(5)))
    p.U([(1,5),(0,5),(2,6),(3,6)])
    p.bar([W(7)],name='b7'); p.a(('wread',7),*D(*XX(6)))
    p.U([(1,6),(0,6),(2,7),(3,7)])
    p.bar([W(8)]+XX(4),name='b8'); p.a(('wread',8),*D(*XX(7),*XX(8)))
    p.U([(1,7),(0,7),(0,8),(1,8),(2,8),(3,8)])
    p.a(('stamp','phB'))
    p.U([(4,g) for g in range(7)])
    p.bar(XX(5)+XX(6)+XX(7)+XX(8),name='bx')
    for i in range(4,9): p.U([(i,g) for g in range(9)])
    return {'init':init,'seq':p.seq}
def v3n(): return v3(False)
def v4(pf=0):
    p=P()
    init=[W(0)]+XX(2)+([('PF',)] if pf else [])+[W(1)]+XX(3)+[('addr',),W(2)]+XX(1)
    p.bar([W(0)]+XX(2),name='b0'); p.a(('wread',0),('dsall',),*D(W(3),*XX(0),W(4)),('vm',2),('gap',3))
    p.U([(2,0)]); p.a(('vm',2))
    p.bar([W(1)]+XX(3),[0],name='b1'); p.a(('wread',1),*D(W(5)),('gap',4))
    p.U([(3,0),(2,1),(3,1)])
    p.bar([W(2)]+XX(1),[1],name='b2'); p.a(('wread',2),*D(W(6)))
    p.U([(1,0),(1,1),(2,2),(3,2),(1,2)])
    p.bar([W(3)]+XX(0),[2],name='b3'); p.a(('wread',3),*D(W(7)))
    p.U([(0,0),(0,1),(0,2),(2,3),(1,3),(0,3)])
    p.bar([W(4)],[3],name='b4'); p.a(('wread',4),*D(W(8),*XX(4),*XX(5),*XX(6),*XX(7),*XX(8)))
    p.U([(3,3),(2,4),(1,4),(0,4)])
    for g in range(5,9):
        p.bar([W(g)]+(XX(4) if g==8 else []),name=f'b{g}'); p.a(('wread',g))
        p.U([(3,g-1),(0,g),(1,g),(2,g)])
    p.U([(3,8)])
    p.a(('stamp','phB'))
    p.U([(4,g) for g in range(7)])
    p.bar(XX(5)+XX(6)+XX(7)+XX(8),name='bx')
    for i in range(4,9): p.U([(i,g) for g in range(9)])
    return {'init':init,'seq':p.seq}
def v4p(): return v4(1)
def addR(r,keep):
    q=[]
    for t in r['seq']:
        if t[0]=='stamp':
            if t[1] in keep: q+=[t,('stamp','R'+t[1])]
        else: q.append(t)
    r['seq']=q; return r
def v4r(): return addR(v4(),('b0','b2','b4','b6','b8','bx'))
def v5():
    p=P()
    init=[W(0)]+XX(2)+[W(1),('addr',)]+XX(3)+[('addr2',[0,1,2,3]),W(2),('addr2',[4,5,6,7,8])]+XX(1)
    p.bar([W(0)]+XX(2),name='b0'); p.a(('wread',0),('dsall',),*D(W(3),*XX(0),W(4)),('vm',2),('gap',2))
    p.U([(2,0)]); p.a(('vm',1))
    p.bar([W(1)]+XX(3),[0],name='b1'); p.a(('wread',1),*D(W(5)),('gap',3))
    p.U([(3,0),(2,1),(3,1)])
    p.bar([W(2)]+XX(1),[1],name='b2'); p.a(('wread',2),*D(W(6)))
    p.U([(1,0),(1,1),(2,2),(3,2),(1,2)])
    p.bar([W(3)]+XX(0),[2],name='b3'); p.a(('wread',3),*D(W(7)))
    p.U([(0,0),(0,1),(0,2),(2,3),(1,3),(0,3)])
    p.bar([W(4)],[3],name='b4'); p.a(('wread',4),*D(W(8),*XX(4)),('gap',4))
    p.U([(3,3),(2,4),(1,4),(0,4)])
    for g in range(5,9):
        p.bar([W(g)]+(XX(4) if g==8 else []),name=f'b{g}'); p.a(('wread',g))
        if g==6: p.a(*D(*XX(5),*XX(6),*XX(7),*XX(8)),('gap',6))
        p.U([(3,g-1),(0,g),(1,g),(2,g)])
    p.U([(3,8)])
    p.a(('stamp','phB'))
    p.U([(4,g) for g in range(7)])
    p.bar(XX(5)+XX(6)+XX(7)+XX(8),name='bx')
    for i in range(4,9): p.U([(i,g) for g in range(9)])
    return {'init':init,'seq':p.seq}
def v6():
    p=P()
    init=[W(0)]+XX(2)+[('stamp','i0'),('late',),W(1)]+XX(3)+[('stamp','i1'),('addr',)]
    p.bar([W(0)]+XX(2),name='b0'); p.a(('wread',0),('dsall',),*D(W(2),W(3),W(4)),('vm',3),('gap',2))
    p.U([(2,0)])
    p.bar([W(1)]+XX(3),[0],name='b1'); p.a(('wread',1),*D(*XX(1),W(5)),('gap',3))
    p.U([(3,0),(2,1)])
    p.bar([W(2)],[1],name='b2'); p.a(('wread',2),*D(*XX(0),W(6)))
    p.U([(3,1),(2,2)])
    p.bar([W(3)],[2],name='b3'); p.a(('wread',3),*D(W(7)))
    p.U([(3,2),(2,3)])
    p.bar([W(4)],[3],name='b4'); p.a(('wread',4),*D(W(8),*XX(4)))
    p.U([(3,3),(2,4)])
    p.bar(XX(1)+[W(5)],name='b5'); p.a(('wread',5))
    p.U([(3,4),(1,0),(2,5)])
    p.bar(XX(0)+[W(6)]); p.a(('wread',6))
    p.U([(3,5),(1,1),(2,6)])
    p.bar([W(7)]); p.a(('wread',7),*D(*XX(5),*XX(6),*XX(7),*XX(8)),('gap',6))
    p.U([(3,6),(1,2),(2,7)])
    p.bar([W(8)],name='b8'); p.a(('wread',8))
    p.U([(3,7),(1,3),(2,8)])
    p.U([(0,g) for g in range(9)]+[(1,g) for g in range(9)])
    p.bar(XX(4),name='phB')
    p.U([(3,8)]+[(4,g) for g in range(7)])
    p.bar(XX(5)+XX(6)+XX(7)+XX(8),name='bx')
    for i in range(4,9): p.U([(i,g) for g in range(9)])
    return {'init':init,'seq':p.seq}
def v6t():
    r=v6(); r['init']=XX(2)+[('TX','x'),W(0),('stamp','i0'),('late',),W(1)]+XX(3)+[('TX','o'),('stamp','i1'),('addr',)]
    return r
def keep(r,k):
    r['seq']=[t for t in r['seq'] if t[0]!='stamp' or t[1] in k]; return r
def v6few(): return keep(v6(),('b0','b1','b4','b5','b8','bx'))
def v7():
    p=P()
    init=XX(2)+[W(0),('late',)]+XX(3)+[W(1)]+XX(1)+[('addr',)]
    p.bar([W(0)]+XX(2),name='b0'); p.a(('wread',0),('dsall',),*D(W(2),*XX(0),W(3),W(4)),('vm',2),('gap',2),('stag',0))
    p.U([(2,0)])
    p.bar([W(1)]+XX(3),[0],name='b1'); p.a(('wread',1),*D(W(5)),('gap',4),('stag',1))
    p.U([(3,0),(2,1),(3,1)])
    p.bar([W(2)]+XX(1),[1],name='b2'); p.a(('wread',2),*D(W(6)))
    p.U([(1,0),(1,1),(2,2)])
    p.bar([W(3)]+XX(0),[2],name='b3'); p.a(('wread',3),*D(W(7)))
    p.U([(3,2),(1,2),(0,0),(0,1),(0,2)])
    p.bar([W(4)],[3],name='b4'); p.a(('wread',4),*D(W(8),*XX(4)))
    p.U([(2,3),(3,3),(1,3)])
    for g in range(5,9):
        p.bar([W(g)],name=f'b{g}'); p.a(('wread',g))
        if g==7: p.a(*D(*XX(5),*XX(6),*XX(7),*XX(8)),('gap',8))
        p.U([(0,g-2),(2,g-1),(3,g-1),(1,g-1)])
    p.bar(XX(4),name='phB')
    p.U([(0,7),(0,8),(1,8),(2,8),(3,8)]+[(4,g) for g in range(6)])
    p.bar(XX(5)+XX(6)+XX(7)+XX(8),name='bx')
    for i in range(4,9): p.U([(i,g) for g in range(9)])
    return {'init':init,'seq':p.seq}
def v7h():
    r=v7(); r['init']=r['init']+[('hop',)]; return r
def v6h():
    r=v6(); r['init']=r['init']+[('hop',)]; return r
def v7e():
    r=v7(); i=r['init']; r['init']=i[:-1]+[('hop',),i[-1]]; return r
def hop_at(r,n):
    i=r['init']; r['init']=i[:n]+[('hop',)]+i[n:]; return r
def v7f(): return hop_at(v7(),3)
def v7g(): return hop_at(v7(),7)
def v6f(): return hop_at(v6(),3)
def v6g(): return hop_at(v6(),8)
def v8(extra=1,gap=4):
    p=P()
    init=XX(2)+[W(0),('hop',),('late',)]+XX(3)+[W(1)]+XX(1)+[('addr',)]+([W(2)]+XX(0) if extra else [])
    p.bar([W(0)]+XX(2),name='b0'); p.a(('wread',0),('dsall',),*D(*([] if extra else [W(2)]+XX(0)),W(3),W(4)),('vm',2),('gap',2))
    p.U([(2,0)]); p.a(('vm',4))
    p.bar([W(1)]+XX(3),[0],name='b1'); p.a(('wread',1),*D(W(5)),('gap',gap),('dsr',2))
    p.U([(3,0),(2,1),(3,1)])
    p.bar([W(2),W(3)]+XX(1)+XX(0),[1],name='b2'); p.a(('wread',2),('wread',3),*D(W(6)))
    p.U([(1,0)]); p.a(('dsr',1)); p.U([(1,1),(0,0),(0,1),(2,2),(3,2),(1,2),(0,2)])
    p.bar([W(4),W(5)],[2,3],name='b3'); p.a(('wread',4),('wread',5),*D(W(7),W(8),*XX(4)))
    p.U([(i,g) for g in (3,4) for i in (2,3,1,0)])
    p.bar([W(6),W(7)],name='b4'); p.a(('wread',6),('wread',7),*D(*XX(5),*XX(6),*XX(7),*XX(8)),('gap',6))
    p.U([(i,g) for g in (5,6) for i in (2,3,1,0)])
    p.bar([W(8)]+XX(4),name='b5'); p.a(('wread',8))
    p.U([(2,7),(3,7),(1,7),(0,7),(0,8),(1,8),(2,8),(3,8)])
    p.a(('stamp','phB'))
    p.U([(4,g) for g in range(6)])
    p.bar(XX(5)+XX(6)+XX(7)+XX(8),name='bx')
    for i in range(4,9): p.U([(i,g) for g in range(9)])
    return {'init':init,'seq':p.seq}
def v8b(): return v8(0)
def v8c(): return v8(1,3)
def nohop(r): r['init']=[t for t in r['init'] if t[0]!='hop']; return r
def v8B():
    r=nohop(v8(0)); r['init'].append(('hop',)); return r
def v8C():
    r=nohop(v8(1)); i=r['init'].index(('addr',)); r['init'].insert(i+1,('hop',)); return r
def v8D():
    r=nohop(v8(1)); i=r['seq'].index(('vm',4)); r['seq'].insert(i+1,('hop',)); return r
def v8E():
    r=nohop(v8(1)); r['init'].insert(0,('hop',)); return r
def v8x():
    r=v8(); q=[];
    for t in r['seq']:
        q.append(t)
        if t[0]=='u' and t[2]==8 and t[1]>=4: q.append(('stamp','r%d'%t[1]))
    r['seq']=q
    r['init']=r['init'][:3]+[('stamp','i0')]+r['init'][3:4]+[('stamp','hop')]+r['init'][4:]
    return r
def v8t():
    r=v8(); r['init'].insert(3,('TP',4)); return r
def v8t0():
    r=v8(); r['init'].insert(0,('TP',4)); return r
def v8tx():
    r=v8(); r['init'].insert(3,('TX','x')); return r
def v8w():
    r=v8(); i=r['init']; r['init']=[i[2],i[0],i[1]]+i[3:]; return r
def v8r(): return addR(v8(),('b2','bx'))
def v9(nx=2,s6=1,x4=0):
    p=P()
    pre=XX(2)+XX(3)+(XX(1) if nx==3 else [])
    init=pre+[W(0),('hop',),('late',),W(1)]+(XX(1) if nx==2 else [])+[('addr',),W(2)]+XX(0)
    p.bar([W(0)]+pre,name='b0'); p.a(('wread',0),('dsall',),*D(W(3),W(4),*([W(5)] if s6 else [])),('vm',2),('gap',2))
    p.U([(2,0),(3,0)]+([(1,0)] if nx==3 else []))
    p.bar([W(1)]+(XX(1) if nx==2 else []),[0],name='b1'); p.a(('wread',1),*D(W(6) if s6 else W(5)),('gap',4),('dsr',2))
    p.U([(1,0),(2,1),(3,1),(1,1)] if nx==2 else [(2,1),(3,1),(1,1)])
    p.bar([W(2),W(3)]+XX(0),[1],name='b2'); p.a(('wread',2),('wread',3),*D(W(7) if s6 else W(6)))
    p.U([(0,0),(0,1)]); p.a(('dsr',1)); p.U([(2,2),(3,2),(1,2),(0,2),(2,3)])
    p.bar([W(4),W(5)],[2,3],name='b3'); p.a(('wread',4),('wread',5),*D(*([] if s6 else [W(7)]),W(8),*XX(4),*XX(5)))
    p.U([(3,3),(1,3),(0,3)]+[(i,4) for i in (2,3,1,0)]+[(2,5)])
    p.bar([W(6),W(7)],[5],name='b4'); p.a(('wread',6),('wread',7),*D(*XX(6),*XX(7),*XX(8)),('gap',6))
    p.U([(3,5),(1,5),(0,5)]+[(i,6) for i in (2,3,1,0)]+[(2,7)])
    p.bar([W(8)]+XX(4),name='b5'); p.a(('wread',8))
    p.U([(3,7),(1,7),(0,7),(0,8),(1,8),(2,8),(3,8)])
    p.a(('stamp','phB'))
    p.U([(4,g) for g in range(6)])
    p.bar(XX(5)+XX(6)+XX(7)+XX(8),name='bx')
    for i in range(4,9): p.U([(i,g) for g in range(9)])
    return {'init':init,'seq':p.seq}
def v9a(): return v9(2,0)
def v9b(): return v9(3,1)
def probeD():
    r=v8(); r['seq']=[t for t in r['seq'] if t[0]!='stamp']
    X=lambda i:('X',i)
    init=[('late',),('stamp','l')]
    for t in [X(2),X(9),X(3),W(0),W(1),X(10),W(2),X(1),X(8),X(0),X(7)]: init+=[t,wt(t)]
    r['init']=init+[('addr',),('hop',)]
    return r
def lean(k):
    r=v8(); full=[('X',3),('X',10),W(1),('X',1),('X',8),W(2),('X',0),('X',7)]
    order={0:[],1:[W(1)],2:[W(1),('X',3),('X',10)],3:[W(1),('X',3),('X',10),W(2)]}[k]
    rest=[t for t in full if t not in order]
    r['init']=XX(2)+[W(0),('hop',),('late',)]+order+[('addr',)]
    q=[]
    for t in r['seq']:
        if t==('dsall',): q+=[t]+D(*rest)+[('vm',sum(5 if x[0]=='W' else 1 for x in rest))]
        elif t[0]!='stamp' or t[1] in('b0','b1','b2','b3'): q.append(t)
    r['seq']=q; return r
def lean0(): return lean(0)
def lean1(): return lean(1)
def lean2(): return lean(2)
def lean3(): return lean(3)

def v10(gap=4,g3=4,xfirst=0,n4=2):
    p=P()
    init=XX(2)+[W(0),('hop',),('late',)]+XX(3)+[W(1)]+XX(1)+[('addr',)]+[W(2)]+XX(0)
    p.bar([W(0)]+XX(2),name='b0'); p.a(('wread',0),('dsall',),*D(W(3),W(4)),('vm',2),('gap',2))
    p.U([(2,0)]); p.a(('vm',4))
    p.bar([W(1)]+XX(3),[0],name='b1'); p.a(('wread',1),*D(W(5)),('gap',gap),('dsr',2))
    p.U([(3,0),(2,1),(3,1)])
    p.bar([W(2),W(3)]+XX(1)+XX(0),[1],name='b2'); p.a(('wread',2),('wread',3),*D(W(6)))
    p.U([(1,0)]); p.a(('dsr',1)); p.U([(1,1),(0,0),(0,1),(2,2),(3,2),(1,2),(0,2)])
    xs=XX(4)+XX(5)+XX(6)+XX(7)+XX(8)
    d=D(W(7),*xs,W(8)) if xfirst else D(W(7),W(8),*xs)
    p.bar([W(4),W(5)],[2,3],name='b3'); p.a(('wread',4),('wread',5),*d,('gap',g3))
    p.U([(i,g) for g in (3,4) for i in (2,3,1,0)])
    p.bar([W(6),W(7)],name='b4'); p.a(('wread',6),('wread',7))
    p.U([(i,g) for g in (5,6,7) for i in (2,3,1,0)])
    p.bar([W(8)]+xs,name='b5'); p.a(('wread',8))
    p.U([(4,g) for g in range(n4)])
    p.U([(0,8),(1,8),(2,8),(3,8)])
    p.a(('stamp','phB'))
    for i in range(4,9): p.U([(i,g) for g in range(9)])
    return {'init':init,'seq':p.seq}
def v10b(): return v10(xfirst=1)
def v10c(): return v10(g3=3,xfirst=1)

def v11(mode=0):
    r=v8(); q=r['seq']
    k=max(j for j,t in enumerate(q) if t[0]=='u' and t[1]==4)
    q=q[:k+1]; G=range(9)
    if mode==0:
        q+=[('u',5,g) for g in G]+[('u',6,g,(4,5)) for g in G]+[('u',7,g,(5,)) for g in G]
        q+=[('u',i,g,(6,)) for g in G for i in (6,7,8)]
    if mode==1:
        q+=[('u',5,g,(3,4)) for g in G]+[('u',6,g,(4,)) for g in G]
        q+=[('u',i,g,(5,)) for g in G for i in (5,6,7)]+[('u',i,g,(6,)) for g in G for i in (6,7,8)]
    if mode==2:
        q+=[('u',5,g) for g in G]+[('u',6,g) for g in G]+[('u',7,g,(5,)) for g in G]
        q+=[('u',i,g,(6,)) for g in G for i in (7,8)]
    r['seq']=q; return r
def v11b(): return v11(1)
def v11c(): return v11(2)

def v12(dsr4=2,g3=3,gx=5,tail=1,pre=1):
    p=P(); G=range(9)
    r=v8(); q=r['seq']
    k=[j for j,t in enumerate(q) if t==('stamp','b3')][0]
    p.seq=q[:k+1]
    xs=XX(4)+XX(5)+XX(6)+XX(7)+XX(8)
    u=lambda i,g,*rows: p.seq.append(('u',i,g,rows) if rows else ('u',i,g))
    p.a(('wread',4),('wread',5),*D(W(7),W(8),*xs),('gap',g3))
    for g in (3,4):
        for i in (2,3,1,0): u(i,g)
        if g==3: pass
    p.a(('gap',gx))
    u(2,5,0,1); u(1,5); u(0,5); u(3,5,1)
    if pre: u(3,5,2,3); u(2,5,2)
    p.bar([W(6),W(7),W(8)],name='b4'); p.a(('wread',6),('wread',7),('wread',8),('dsr',dsr4))
    if not pre: u(3,5,2,3); u(2,5,2)
    if pre: p.a(('dsn',6))
    for g in (6,7,8): u(0,g); u(1,g,0); u(2,g,0)
    p.a(('dsr',1),('stamp','r0'))
    for g in (6,7,8): u(3,g); u(2,g,1,2); u(1,g,1)
    p.bar(xs,name='bx')
    for g in G: u(4,g)
    if tail==1:
        for g in G: u(5,g,3,4)
        for g in G: u(6,g,4)
        for g in G: u(5,g,5); u(6,g,5); u(7,g,5)
    else:
        for g in G: u(5,g)
        for g in G: u(6,g,4,5)
        for g in G: u(7,g,5)
    for g in G: u(6,g,6); u(7,g,6); u(8,g,6)
    r['seq']=[t for t in p.seq if t[0]!='dsn']; return r
def v12b(): return v12(pre=0)
def v12c(): return v12(pre=0,tail=0)
def v12d(): return v12(pre=0,g3=4,gx=4)
def v12e(): return v12(pre=0,dsr4=3)

def v13(mode=0):
    r=v8(); q=r['seq']
    k=max(j for j,t in enumerate(q) if t[0]=='u' and t[1]==4)
    q=q[:k+1]; G=range(9); S=(6,(2,)); B=(6,(0,1))
    if mode==0:
        for g in G: q+=[('u',5,g),('u',8,g,(S,))]
        q+=[('u',6,g,(S,5,4)) for g in G]+[('u',7,g,(S,5)) for g in G]
        q+=[('u',i,g,(B,)) for g in G for i in (6,7,8)]
        r['split']=(6,)
    if mode==1:
        for g in G: q+=[('u',5,g),('u',8,g,(S,))]
        q+=[('u',6,g) for g in G]+[('u',7,g,(S,5)) for g in G]
        q+=[('u',i,g,(B,)) for g in G for i in (7,8)]
        r['split']=(6,)
    if mode==2:
        for g in G: q+=[('u',5,g),('u',8,g,(S,))]
        q+=[('u',6,g) for g in G]+[('u',7,g) for g in G]+[('u',8,g,(B,)) for g in G]
        r['split']=(6,)
    if mode==3:
        S5=(5,(2,)); B5=(5,(0,1))
        for g in G: q+=[('u',5,g),('u',8,g,(S,)),('u',7,g,(S,S5))]
        q+=[('u',6,g,(S,5,4)) for g in G]+[('u',7,g,(B5,)) for g in G]
        q+=[('u',i,g,(B,)) for g in G for i in (6,7,8)]
        r['split']=(5,6)
    r['seq']=q; return r
def v13b(): return v13(1)
def v13c(): return v13(2)
def v13d(): return v13(3)
```
